```python
import torch

def _softmax(x, axis=-1):
    return torch.softmax(x, dim=axis)
def _gelu(x):
    return torch.nn.functional.gelu(x, approximate="tanh")
def _silu(x):
    return torch.nn.functional.silu(x)
def _sigmoid(x):
    return torch.sigmoid(x)
def _layernorm(x, axis=-1, eps=1e-5):
    m = x.mean(dim=axis, keepdim=True)
    v = x.var(dim=axis, keepdim=True, unbiased=False)
    return (x - m) / torch.sqrt(v + eps)
def _scatter_add(tgt, idx, src, axis=0):
    return tgt.clone().index_add_(axis, idx, src)
def _segment_sum(src, seg, n):
    out = torch.zeros((n,) + src.shape[1:], dtype=src.dtype)
    return out.index_add_(0, seg, src)
def _pad(x, pw):
    flat = tuple(v for pair in reversed(pw) for v in pair)
    return torch.nn.functional.pad(x, flat)

kernel_name = 'concat_heads__gqa_block_cached__gqa_block_cached__near_ridge'

def setup_inputs():

    _w = (lambda a: (lambda t: t.to(torch.bfloat16) if t.is_floating_point() else t)(torch.as_tensor(a)))
    def _A_setup():
        B, Sq, D = 16, 96, 512
        Hq, Hkv, Sk, Dh = 32, 32, 96, 128
        assert Hq % Hkv == 0, (Hq, Hkv)
        return {
            "x": _w((lambda *s: torch.randn(*s, dtype=torch.bfloat16) * 0.8)(B, Sq, D)),
            "k_cache": _w((lambda *s: torch.randn(*s, dtype=torch.bfloat16) * 0.8)(B, Hkv, Sk, Dh)),
            "v_cache": _w((lambda *s: torch.randn(*s, dtype=torch.bfloat16) * 0.05)(B, Hkv, Sk, Dh)),
            "wq": _w((lambda *s: torch.randn(*s, dtype=torch.bfloat16) * 0.8)(D, Hq * Dh) * (D ** -0.5)),
            "wo": _w((lambda *s: torch.randn(*s, dtype=torch.bfloat16) * 0.05)(Hq * Dh, D) * ((Hq * Dh) ** -0.5)),
        }
    _A_in = _A_setup()

    def _B_setup():
        B, Sq, D = 16, 96, 512
        Hq, Hkv, Sk, Dh = 32, 32, 96, 128
        assert Hq % Hkv == 0, (Hq, Hkv)
        return {
            "x": _w((lambda *s: torch.randn(*s, dtype=torch.bfloat16) * 0.8)(B, Sq, D)),
            "k_cache": _w((lambda *s: torch.randn(*s, dtype=torch.bfloat16) * 0.8)(B, Hkv, Sk, Dh)),
            "v_cache": _w((lambda *s: torch.randn(*s, dtype=torch.bfloat16) * 0.05)(B, Hkv, Sk, Dh)),
            "wq": _w((lambda *s: torch.randn(*s, dtype=torch.bfloat16) * 0.8)(D, Hq * Dh) * (D ** -0.5)),
            "wo": _w((lambda *s: torch.randn(*s, dtype=torch.bfloat16) * 0.05)(Hq * Dh, D) * ((Hq * Dh) ** -0.5)),
        }
    _B_in = _B_setup()

    return {
        "A_x": _A_in["x"],
        "A_k_cache": _A_in["k_cache"],
        "A_v_cache": _A_in["v_cache"],
        "A_wq": _A_in["wq"],
        "A_wo": _A_in["wo"],
        "B_x": _B_in["x"],
        "B_k_cache": _B_in["k_cache"],
        "B_v_cache": _B_in["v_cache"],
        "B_wq": _B_in["wq"],
        "B_wo": _B_in["wo"],
    }

def reference(A_x, A_k_cache, A_v_cache, A_wq, A_wo, B_x, B_k_cache, B_v_cache, B_wq, B_wo):
    def _A_ref(x, k_cache, v_cache, wq, wo):
        B, Sq, D = x.shape
        Hq, Dh = 32, 128
        Hkv = k_cache.shape[1]
        rep = Hq // Hkv
        q = (lambda x, *d: x.permute(*d))((x @ wq).reshape(B, Sq, Hq, Dh), 0, 2, 1, 3)
        k = (lambda x, n, axis: torch.repeat_interleave(x, n, dim=axis))(k_cache, rep, axis=1)
        v = (lambda x, n, axis: torch.repeat_interleave(x, n, dim=axis))(v_cache, rep, axis=1)
        scores = torch.einsum("bhqd,bhkd->bhqk", q, k) * (Dh ** -0.5)
        p = _softmax(scores, axis=-1)
        o = torch.einsum("bhqk,bhkd->bhqd", p, v)
        return (lambda x, *d: x.permute(*d))(o, 0, 2, 1, 3).reshape(B, Sq, Hq * Dh) @ wo

    def _B_ref(x, k_cache, v_cache, wq, wo):
        B, Sq, D = x.shape
        Hq, Dh = 32, 128
        Hkv = k_cache.shape[1]
        rep = Hq // Hkv
        q = (lambda x, *d: x.permute(*d))((x @ wq).reshape(B, Sq, Hq, Dh), 0, 2, 1, 3)
        k = (lambda x, n, axis: torch.repeat_interleave(x, n, dim=axis))(k_cache, rep, axis=1)
        v = (lambda x, n, axis: torch.repeat_interleave(x, n, dim=axis))(v_cache, rep, axis=1)
        scores = torch.einsum("bhqd,bhkd->bhqk", q, k) * (Dh ** -0.5)
        p = _softmax(scores, axis=-1)
        o = torch.einsum("bhqk,bhkd->bhqd", p, v)
        return (lambda x, *d: x.permute(*d))(o, 0, 2, 1, 3).reshape(B, Sq, Hq * Dh) @ wo

    a = _A_ref(A_x, A_k_cache, A_v_cache, A_wq, A_wo)
    b = _B_ref(B_x, B_k_cache, B_v_cache, B_wq, B_wo)
    return torch.concatenate([a, b], axis=-1)
```

```python
import re


def R(prefix, base, n=1):
    return [f"{prefix}{base + i}" for i in range(n)]


def rng(prefix, base, n):
    if n == 1:
        return f"{prefix}{base}"
    return f"{prefix}[{base}:{base + n - 1}]"


class I:
    __slots__ = ("text", "kind", "rd", "wr", "needs", "tag", "c", "ab", "cnt")

    def __init__(self, text, kind, rd=(), wr=(), needs=(), tag=None, c=(), ab=(), cnt=None):
        self.text = text
        self.kind = kind
        self.rd = frozenset(rd)
        self.wr = frozenset(wr)
        self.needs = tuple(needs)
        self.tag = tag
        self.c = tuple(c)
        self.ab = frozenset(ab)
        self.cnt = cnt


class Prog:
    def __init__(self):
        self.ins = []

    def add(self, i):
        self.ins.append(i)
        return i

    def salu(self, text, rd=(), wr=()):
        return self.add(I(text, "salu", rd, wr))

    def valu(self, text, rd=(), wr=()):
        return self.add(I(text, "valu", rd, wr))

    def trans(self, text, rd=(), wr=()):
        return self.add(I(text, "trans", rd, wr))

    def perm(self, text, rd=(), wr=()):
        return self.add(I(text, "perm", rd, wr))

    def other(self, text, needs=()):
        return self.add(I(text, "other", needs=needs))

    def barrier(self, needs=()):
        return self.add(I("s_barrier", "bar", needs=needs))

    def label(self, name):
        return self.add(I(name + ":", "label"))

    def waitall(self):
        return self.add(I("s_waitcnt vmcnt(0) lgkmcnt(0)", "waitall"))

    def mfma(self, d, a, b, c, needs=()):
        dp, db = d
        ap, ab_ = a
        bp, bb = b
        dregs = R(dp, db, 16)
        aregs = R(ap, ab_, 4)
        bregs = R(bp, bb, 4)
        if c is None:
            ctext = "0"
            cregs = []
        else:
            cregs = R(c[0], c[1], 16)
            ctext = rng(c[0], c[1], 16)
        t = f"v_mfma_f32_32x32x16_bf16 {rng(dp, db, 16)}, {rng(ap, ab_, 4)}, {rng(bp, bb, 4)}, {ctext}"
        return self.add(I(t, "mfma", aregs + bregs + cregs, dregs, needs=needs, c=cregs, ab=aregs + bregs))

    def vload(self, text, rd, wr, tag=None, needs=()):
        return self.add(I(text, "vload", rd, wr, tag=tag, cnt="vm", needs=needs))

    def vstore(self, text, rd, tag=None, needs=()):
        return self.add(I(text, "vstore", rd, (), tag=tag, cnt="vm", needs=needs))

    def dma(self, text, rd, tag=None, needs=()):
        return self.add(I(text, "dma", list(rd) + ["m0"], (), tag=tag, cnt="vm", needs=needs))

    def dsr(self, text, rd, wr, tag=None, needs=()):
        return self.add(I(text, "dsr", rd, wr, tag=tag, cnt="lg", needs=needs))

    def dsw(self, text, rd, tag=None, needs=()):
        return self.add(I(text, "dsw", rd, (), tag=tag, cnt="lg", needs=needs))


def waitcnt_pass(ins):
    out = []
    q = {"vm": [], "lg": []}
    maxc = {"vm": 63, "lg": 15}
    for it in ins:
        if it.kind == "waitall":
            q["vm"].clear()
            q["lg"].clear()
            out.append(it)
            continue
        if it.kind == "label":
            out.append(it)
            continue
        want = {}
        touched = it.rd | it.wr
        for c in ("vm", "lg"):
            last = -1
            for p, op in enumerate(q[c]):
                if (op.wr & touched) or (op.tag is not None and op.tag in it.needs):
                    last = p
                elif op.kind in ("vstore", "dsw") and (op.rd & it.wr):
                    last = p
            if last >= 0:
                want[c] = len(q[c]) - 1 - last
        if it.cnt is not None and len(q[it.cnt]) + 1 > maxc[it.cnt]:
            n = maxc[it.cnt] - 1
            want[it.cnt] = min(want.get(it.cnt, n), n)
        if want:
            parts = []
            for c, name in (("vm", "vmcnt"), ("lg", "lgkmcnt")):
                if c in want:
                    n = want[c]
                    parts.append(f"{name}({n})")
                    q[c] = q[c][len(q[c]) - n:] if n > 0 else []
            out.append(I("s_waitcnt " + " ".join(parts), "wait"))
        out.append(it)
        if it.cnt is not None:
            q[it.cnt].append(it)
    return out


def states_of(it):
    if it.kind == "label":
        return 0
    if it.kind == "nop":
        return int(it.text.split()[1]) + 1
    return 1


def is_vec_reg(r):
    return r[0] in "va" and r[1:].isdigit()


def hazard_need(p, c):
    need = 0
    pk, ck = p.kind, c.kind
    valu_like = ("valu", "trans", "perm")
    if pk in valu_like:
        vw = {r for r in p.wr if is_vec_reg(r)}
        sw = {r for r in p.wr if not is_vec_reg(r)}
        if ck == "mfma" and (vw & c.rd):
            need = max(need, 2)
        if ck == "perm" and (vw & c.rd):
            need = max(need, 2)
        if pk == "trans" and ck in valu_like and (vw & c.rd):
            need = max(need, 1)
        if "readfirstlane" in c.text and (vw & c.rd):
            need = max(need, 1)
        if sw:
            if ck in ("vload", "vstore", "dma") and (sw & c.rd):
                need = max(need, 5)
            if ck in valu_like and (sw & c.rd):
                need = max(need, 2)
            if ck == "salu" and (sw & c.rd):
                need = max(need, 2)
    if pk == "mfma":
        d = p.wr
        if ck == "mfma":
            if d & c.ab:
                need = max(need, 12)
            cc = frozenset(c.c)
            if d & cc and cc != d:
                need = max(need, 10)
            if d & c.wr and c.wr != d:
                need = max(need, 12)
        elif ck in valu_like + ("vload", "vstore", "dma", "dsr", "dsw"):
            if d & (c.rd | c.wr):
                need = max(need, 12)
        if ck in valu_like and (frozenset(p.c) & c.wr):
            need = max(need, 7)
    if pk == "salu" and "m0" in p.wr and ck == "dma":
        need = max(need, 1)
    if pk == "vstore" and ck in valu_like and (p.rd & c.wr):
        need = max(need, 2)
    return need


def hazard_pass(ins):
    out = []
    for it in ins:
        if it.kind == "label":
            out.append(it)
            continue
        dist = 0
        pad = 0
        for p in reversed(out):
            if p.kind == "label":
                break
            if dist >= 13:
                break
            n = hazard_need(p, it)
            if n > dist:
                pad = max(pad, n - dist)
            dist += states_of(p)
        while pad > 0:
            k = min(pad, 16)
            out.append(I(f"s_nop {k - 1}", "nop"))
            pad -= k
        out.append(it)
    return out


def finalize(prog):
    ins = waitcnt_pass(prog.ins)
    ins = hazard_pass(ins)
    lines = []
    for it in ins:
        if it.kind == "label":
            lines.append(it.text)
        else:
            lines.append("    " + it.text)
    return "\n".join(lines) + "\n", ins


def merge(main, fill, ratio_num, ratio_den=1, start=0):
    out = []
    fi = 0
    acc = 0
    for k, m in enumerate(main):
        out.extend(m)
        if k < start:
            continue
        acc += ratio_num
        while acc >= ratio_den and fi < len(fill):
            out.extend(fill[fi])
            fi += 1
            acc -= ratio_den
    while fi < len(fill):
        out.extend(fill[fi])
        fi += 1
    return out
```

```python
import math
import struct
import sys

sys.path.insert(0, "work")
from asmgen import *

NAME = "concat_heads__gqa_block_cached__gqa_block_cached__near_ridge"
OUT = f"cdna_kernels/{NAME}.s"


def f32bits(x):
    return struct.unpack("<I", struct.pack("<f", x))[0]


class G:
    def __init__(self):
        self.p = Prog()

    def take(self):
        r = self.p.ins
        self.p.ins = []
        return r


def gated_merge(main, fill, ratio):
    out = []
    mi = fi = 0
    while mi < len(main) or fi < len(fill):
        progressed = False
        if mi < len(main) and main[mi][1] < fi:
            out.extend(main[mi][0])
            mi += 1
            progressed = True
            k = 0
            while k < ratio and fi < len(fill) and fill[fi][1] < mi:
                out.extend(fill[fi][0])
                fi += 1
                k += 1
        else:
            if fi < len(fill) and fill[fi][1] < mi:
                out.extend(fill[fi][0])
                fi += 1
                progressed = True
        assert progressed, (mi, fi)
    return out


def gen_k1():
    p = Prog()
    S = p.salu
    V = p.valu
    XLDS = 0
    RING = 98304
    S("s_cmp_ge_u32 s2, 256", ["s2"], ["scc"])
    S("s_cbranch_scc1 L_k1_end", ["scc"])
    S("s_and_b32 s40, s2, 7", ["s2"], ["s40"])
    S("s_lshr_b32 s41, s2, 3", ["s2"], ["s41"])
    S("s_and_b32 s42, s41, 15", ["s41"], ["s42"])
    S("s_lshr_b32 s43, s41, 4", ["s41"], ["s43"])
    S("s_mul_i32 s3, s43, 40", ["s43"], ["s3"])
    S("s_add_u32 s4, s0, s3", ["s0", "s3"], ["s4"])
    S("s_addc_u32 s5, s1, 0", ["s1"], ["s5"])
    p.other("s_load_dwordx8 s[8:15], s[4:5], 0")
    p.other("s_load_dwordx2 s[16:17], s[0:1], 96")
    V("v_lshrrev_b32 v254, 6, v0", ["v0"], ["v254"])
    V("v_and_b32 v255, 63, v0", ["v0"], ["v255"])
    V("v_readfirstlane_b32 s44, v254", ["v254"], ["s44"])
    S("s_lshl_b32 s45, s40, 2", ["s40"], ["s45"])
    S("s_add_u32 s45, s45, s44", ["s45", "s44"], ["s45"])
    p.other("s_waitcnt lgkmcnt(0)")
    S("s_mul_i32 s3, s42, 98304", ["s42"], ["s3"])
    S("s_add_u32 s20, s8, s3", ["s8", "s3"], ["s20"])
    S("s_addc_u32 s21, s9, 0", ["s9"], ["s21"])
    S("s_mov_b32 s22, 98304", [], ["s22"])
    S("s_mov_b32 s23, 0x20000", [], ["s23"])
    S("s_mov_b32 s24, s14", ["s14"], ["s24"])
    S("s_mov_b32 s25, s15", ["s15"], ["s25"])
    S("s_mov_b32 s26, 4194304", [], ["s26"])
    S("s_mov_b32 s27, 0x20000", [], ["s27"])
    S("s_lshl_b32 s3, s42, 5", ["s42"], ["s3"])
    S("s_add_u32 s3, s3, s45", ["s3", "s45"], ["s3"])
    S("s_mul_i32 s3, s3, 24576", ["s3"], ["s3"])
    S("s_add_u32 s28, s10, s3", ["s10", "s3"], ["s28"])
    S("s_addc_u32 s29, s11, 0", ["s11"], ["s29"])
    S("s_mov_b32 s30, 24576", [], ["s30"])
    S("s_mov_b32 s31, 0x20000", [], ["s31"])
    S("s_add_u32 s32, s12, s3", ["s12", "s3"], ["s32"])
    S("s_addc_u32 s33, s13, 0", ["s13"], ["s33"])
    S("s_mov_b32 s34, 24576", [], ["s34"])
    S("s_mov_b32 s35, 0x20000", [], ["s35"])
    S("s_mul_i32 s3, s41, 786432", ["s41"], ["s3"])
    S("s_add_u32 s36, s16, s3", ["s16", "s3"], ["s36"])
    S("s_addc_u32 s37, s17, 0", ["s17"], ["s37"])
    S("s_mov_b32 s38, 786432", [], ["s38"])
    S("s_mov_b32 s39, 0x20000", [], ["s39"])
    S("s_lshl_b32 s46, s44, 14", ["s44"], ["s46"])
    S(f"s_add_u32 s46, s46, {RING}", ["s46"], ["s46"])
    S("s_lshl_b32 s47, s45, 8", ["s45"], ["s47"])
    S("s_mul_i32 s57, s44, 24576", ["s44"], ["s57"])
    S("s_mul_i32 s58, s45, 24576", ["s45"], ["s58"])
    S("s_mul_i32 s59, s44, 3", ["s44"], ["s59"])
    for m in range(3):
        S(f"s_add_u32 s3, s59, {m}", ["s59"], ["s3"])
        S(f"s_lshl_b32 s{48 + m}, s3, 13", ["s3"], [f"s{48 + m}"])
        S(f"s_lshl_b32 s{51 + m}, s3, 10", ["s3"], [f"s{51 + m}"])
        S(f"s_and_b32 s{54 + m}, s3, 1", ["s3"], [f"s{54 + m}"])
        S(f"s_lshl_b32 s{54 + m}, s{54 + m}, 6", [f"s{54 + m}"], [f"s{54 + m}"])
    S("s_mov_b32 s62, 8192", [], ["s62"])
    S("s_mov_b32 s63, 16384", [], ["s63"])
    cexp = (128.0 ** -0.5) * math.log2(math.e)
    S(f"s_mov_b32 s64, {f32bits(cexp):#x}", [], ["s64"])
    L = "v255"
    V(f"v_lshrrev_b32 v248, 5, {L}", [L], ["v248"])
    V(f"v_bfe_u32 v249, {L}, 2, 2", [L], ["v249"])
    V(f"v_bfe_u32 v250, {L}, 4, 1", [L], ["v250"])
    V(f"v_and_b32 v251, 1, {L}", [L], ["v251"])
    V(f"v_bfe_u32 v252, {L}, 1, 1", [L], ["v252"])
    V("v_lshl_add_u32 v251, v251, 1, v252", ["v251", "v252"], ["v251"])
    V("v_lshlrev_b32 v251, 3, v251", ["v251"], ["v251"])
    V("v_lshl_add_u32 v251, v250, 5, v251", ["v250", "v251"], ["v251"])
    V("v_lshl_add_u32 v252, v248, 3, v249", ["v248", "v249"], ["v252"])
    V("v_lshl_add_u32 v252, v252, 8, v251", ["v252", "v251"], ["v252"])
    V("v_add_u32 v252, s46, v252", ["s46", "v252"], ["v252"])
    for t in range(4):
        V(f"v_xor_b32 v253, {t}, v249", ["v249"], ["v253"])
        V(f"v_lshl_add_u32 v{232 + t}, v253, 6, v252", ["v253", "v252"], [f"v{232 + t}"])
    V("v_lshl_add_u32 v252, v248, 2, v249", ["v248", "v249"], ["v252"])
    V("v_lshl_add_u32 v252, v252, 8, v251", ["v252", "v251"], ["v252"])
    V("v_add_u32 v252, s57, v252", ["s57", "v252"], ["v252"])
    for t in range(4):
        V(f"v_xor_b32 v253, {t}, v249", ["v249"], ["v253"])
        V(f"v_lshl_add_u32 v{244 + t}, v253, 6, v252", ["v253", "v252"], [f"v{244 + t}"])
    V(f"v_and_b32 v252, 31, {L}", [L], ["v252"])
    V("v_bfe_u32 v253, v252, 1, 3", ["v252"], ["v253"])
    V("v_lshlrev_b32 v252, 7, v252", ["v252"], ["v252"])
    for ss in range(4):
        V(f"v_add_u32 v254, {2 * ss}, v248", ["v248"], ["v254"])
        V("v_xor_b32 v254, v254, v253", ["v254", "v253"], ["v254"])
        V(f"v_lshl_add_u32 v{236 + ss}, v254, 4, v252", ["v254", "v252"], [f"v{236 + ss}"])
    V(f"v_lshrrev_b32 v252, 4, {L}", [L], ["v252"])
    V(f"v_and_b32 v253, 15, {L}", [L], ["v253"])
    V("v_lshlrev_b32 v254, 2, v252", ["v252"], ["v254"])
    V("v_xor_b32 v253, v253, v254", ["v253", "v254"], ["v253"])
    V("v_lshlrev_b32 v253, 4, v253", ["v253"], ["v253"])
    V("v_lshl_add_u32 v240, v252, 13, v253", ["v252", "v253"], ["v240"])
    V("v_lshl_add_u32 v243, v252, 8, v253", ["v252", "v253"], ["v243"])
    V("v_add_u32 v243, s57, v243", ["s57", "v243"], ["v243"])
    V(f"v_and_b32 v252, 31, {L}", [L], ["v252"])
    V("v_lshlrev_b32 v252, 8, v252", ["v252"], ["v252"])
    V("v_lshl_add_u32 v241, v248, 4, v252", ["v248", "v252"], ["v241"])
    V(f"v_lshlrev_b32 v242, 4, {L}", [L], ["v242"])
    V(f"v_lshrrev_b32 v248, 3, {L}", [L], ["v248"])
    V(f"v_and_b32 v249, 7, {L}", [L], ["v249"])
    V(f"v_lshrrev_b32 v253, 4, {L}", [L], ["v253"])
    V("v_xor_b32 v249, v249, v253", ["v249", "v253"], ["v249"])
    V("v_lshlrev_b32 v249, 4, v249", ["v249"], ["v249"])
    V("v_lshl_add_u32 v249, v248, 10, v249", ["v248", "v249"], ["v249"])
    for m in range(3):
        V(f"v_xor_b32 v{250 + m}, s{54 + m}, v249", [f"s{54 + m}", "v249"], [f"v{250 + m}"])

    sidx = [0]

    def stmp():
        sidx[0] = (sidx[0] + 1) % 4
        return f"s{70 + sidx[0]}"

    def x_dma(j):
        for m in range(3):
            st = stmp()
            S(f"s_add_u32 m0, s{51 + m}, {XLDS + j * 12288}", [f"s{51 + m}"], ["m0"])
            S(f"s_add_u32 {st}, s{48 + m}, {j * 128}", [f"s{48 + m}"], [st])
            p.dma(f"buffer_load_dwordx4 v{250 + m}, s[20:23], {st} offen lds",
                  [f"v{250 + m}", st] + R("s", 20, 4), tag=("x", j))

    def w_dma(stg):
        for n in range(4):
            st = stmp()
            S(f"s_add_u32 m0, s46, {(stg % 4) * 4096 + n * 1024}", ["s46"], ["m0"])
            S(f"s_add_u32 {st}, s47, {(16 * stg + 4 * n) * 8192}", ["s47"], [st])
            p.dma(f"buffer_load_dwordx4 v240, s[24:27], {st} offen lds",
                  ["v240", st] + R("s", 24, 4), tag=("w", stg))

    kv = []

    def mk_k(kt, s):
        def f():
            so = ["0", "s62", "s63"][kt]
            p.vload(f"buffer_load_dwordx4 {rng('a', (kt * 8 + s) * 4, 4)}, v241, s[28:31], {so} offen offset:{s * 32}",
                    ["v241"] + R("s", 28, 4) + ([so] if kt else []), R("a", (kt * 8 + s) * 4, 4))
        return f

    def mk_v(n):
        def f():
            st = stmp()
            S(f"s_mov_b32 {st}, {(n >> 2) * 4096}", [], [st])
            p.vload(f"buffer_load_dwordx4 {rng('a', 96 + 4 * n, 4)}, v242, s[32:35], {st} offen offset:{(n & 3) * 1024}",
                    ["v242", st] + R("s", 32, 4), R("a", 96 + 4 * n, 4))
        return f

    for kt in range(3):
        for s in range(8):
            kv.append(mk_k(kt, s))
    for n in range(24):
        kv.append(mk_v(n))

    AF = 192
    BF = 208

    def a_read(stg, t):
        for r2 in range(2):
            p.dsr(f"ds_read_b64_tr_b16 {rng('v', AF + 4 * t + 2 * r2, 2)}, v{232 + t} offset:{(stg % 4) * 4096 + r2 * 1024}",
                  [f"v{232 + t}"], R("v", AF + 4 * t + 2 * r2, 2), needs=[("w", stg)])

    def b_read(stp):
        j, ss = stp >> 2, stp & 3
        jj = j if j < 4 else j - 4
        for qt in range(3):
            d = BF + 12 * (stp & 1) + 4 * qt
            p.dsr(f"ds_read_b128 {rng('v', d, 4)}, v{236 + ss} offset:{jj * 12288 + qt * 4096}",
                  [f"v{236 + ss}"], R("v", d, 4))

    def acc(t, qt):
        return 16 * (4 * qt + t)

    x_dma(0)
    for stg in range(4):
        w_dma(stg)
    for j in range(1, 8):
        x_dma(j)
    p.barrier(needs=[("x", 0)])
    for t in range(4):
        a_read(0, t)
    b_read(0)
    NST = 32
    kvi = 0
    for s in range(NST):
        for t in range(4):
            for qt in range(3):
                p.mfma(("v", acc(t, qt)), ("v", AF + 4 * t), ("v", BF + 12 * (s & 1) + 4 * qt),
                       None if s == 0 else ("v", acc(t, qt)))
            if s + 1 < NST:
                a_read(s + 1, t)
                if t == 0:
                    if (s + 1) % 4 == 0:
                        if s + 1 == 16:
                            for ss in range(4):
                                V(f"v_add_u32 v{236 + ss}, 49152, v{236 + ss}", [f"v{236 + ss}"], [f"v{236 + ss}"])
                        p.barrier(needs=[("x", (s + 1) >> 2)])
                    b_read(s + 1)
            if t in (1, 2) and kvi < len(kv):
                kv[kvi]()
                kvi += 1
        if s + 4 < NST:
            w_dma(s + 4)
    while kvi < len(kv):
        kv[kvi]()
        kvi += 1

    p.barrier()
    g = G()
    q = g.p
    main = []
    fill = []

    def qcvt(n):
        for pp in range(8):
            q.valu(f"v_cvt_pk_bf16_f32 v{8 * n + pp}, v{16 * n + 2 * pp}, v{16 * n + 2 * pp + 1}",
                   [f"v{16 * n + 2 * pp}", f"v{16 * n + 2 * pp + 1}"], [f"v{8 * n + pp}"])
        return [[i] for i in g.take()]

    pre = []
    for n in range(4):
        for it in qcvt(n):
            pre.extend(it)
    for n in range(4, 12):
        for it in qcvt(n):
            fill.append((it, -1))
    for n in range(24):
        q.dsw(f"ds_write_b128 v243, {rng('a', 96 + 4 * n, 4)} offset:{n * 1024}", ["v243"] + R("a", 96 + 4 * n, 4))
        fill.append((g.take(), -1))
    idx_vw_done = len(fill) - 1

    SB = [192, 144, 96]

    def QF(qt, s):
        return 8 * (4 * qt + (s >> 1)) + 4 * (s & 1)

    s_end = []
    for qt in range(3):
        gate = -1 if qt == 0 else 8 * 8 - 1
        for kt in range(3):
            for s in range(8):
                q.mfma(("v", SB[qt] + 16 * kt), ("a", (kt * 8 + s) * 4), ("v", QF(qt, s)),
                       None if s == 0 else ("v", SB[qt] + 16 * kt))
                main.append((g.take(), gate))
        s_end.append(len(main) - 1)

    def softmax(qt):
        b = SB[qt]
        v = [f"v{b + i}" for i in range(48)]
        items = []
        q.valu(f"v_max3_f32 v248, {v[0]}, {v[1]}, {v[2]}", v[0:3], ["v248"])
        i = 3
        while i < 48:
            j = min(i + 1, 47)
            q.valu(f"v_max3_f32 v248, v248, {v[i]}, {v[j]}", ["v248", v[i], v[j]], ["v248"])
            i += 2
        q.valu("v_mov_b32 v249, v248", ["v248"], ["v249"])
        q.perm("v_permlane32_swap_b32 v248, v249", ["v248", "v249"], ["v248", "v249"])
        q.valu("v_max_f32 v248, v248, v249", ["v248", "v249"], ["v248"])
        q.valu("v_mul_f32 v248, s64, v248", ["s64", "v248"], ["v248"])
        for i in range(48):
            q.valu(f"v_fma_f32 {v[i]}, {v[i]}, s64, -v248", [v[i], "s64", "v248"], [v[i]])
            q.trans(f"v_exp_f32 {v[i]}, {v[i]}", [v[i]], [v[i]])
        q.valu(f"v_add_f32 v250, {v[0]}, {v[1]}", [v[0], v[1]], ["v250"])
        for i in range(2, 48):
            q.valu(f"v_add_f32 v250, v250, {v[i]}", ["v250", v[i]], ["v250"])
        q.valu("v_mov_b32 v251, v250", ["v250"], ["v251"])
        q.perm("v_permlane32_swap_b32 v250, v251", ["v250", "v251"], ["v250", "v251"])
        q.valu("v_add_f32 v250, v250, v251", ["v250", "v251"], ["v250"])
        q.trans("v_rcp_f32 v250, v250", ["v250"], ["v250"])
        for pp in range(24):
            a0, a1 = v[2 * pp], v[2 * pp + 1]
            q.valu(f"v_mul_f32 {a0}, {a0}, v250", [a0, "v250"], [a0])
            q.valu(f"v_mul_f32 {a1}, {a1}, v250", [a1, "v250"], [a1])
            q.valu(f"v_cvt_pk_bf16_f32 v{b + pp}, {a0}, {a1}", [a0, a1], [f"v{b + pp}"])
        return [[i] for i in g.take()]

    OB = 0
    VT = 64
    STG = [192, 144, None]

    def ocvt(qt):
        for t in range(4):
            for ap in range(2):
                u = 2 * t + ap
                src = OB + 16 * t + 8 * ap
                dst = (STG[qt] + 4 * u) if STG[qt] is not None else src
                for pp in range(4):
                    q.valu(f"v_cvt_pk_bf16_f32 v{dst + pp}, v{src + 2 * pp}, v{src + 2 * pp + 1}",
                           [f"v{src + 2 * pp}", f"v{src + 2 * pp + 1}"], [f"v{dst + pp}"])
                st = stmp()
                q.salu(f"s_add_u32 {st}, s58, {u * 3072 + qt * 1024}", ["s58"], [st])
                q.vstore(f"buffer_store_dwordx4 {rng('v', dst, 4)}, v242, s[36:39], {st} offen",
                         R("v", dst, 4) + ["v242", st] + R("s", 36, 4))
        return [[i] for i in g.take()]

    sm_end = []
    oc_end = []
    pv_end = [None] * 3
    base_pv = len(main)
    for qt in range(3):
        pv_end[qt] = base_pv + 24 * (qt + 1) - 1
    for it in softmax(0):
        fill.append((it, s_end[0]))
    sm_end.append(len(fill) - 1)
    for it in softmax(1):
        fill.append((it, s_end[1]))
    sm_end.append(len(fill) - 1)
    for it in ocvt(0):
        fill.append((it, pv_end[0]))
    oc_end.append(len(fill) - 1)
    for it in softmax(2):
        fill.append((it, s_end[2]))
    sm_end.append(len(fill) - 1)
    for it in ocvt(1):
        fill.append((it, pv_end[1]))
    oc_end.append(len(fill) - 1)
    for it in ocvt(2):
        fill.append((it, pv_end[2]))
    oc_end.append(len(fill) - 1)

    seq = [(qt, t, s) for qt in range(3) for t in range(4) for s in range(6)]

    def vt_read(k):
        qt, t, s = seq[k]
        d = VT + 4 * (k % 8)
        for r2 in range(2):
            q.dsr(f"ds_read_b64_tr_b16 {rng('v', d + 2 * r2, 2)}, v{244 + t} offset:{s * 4096 + r2 * 2048}",
                  [f"v{244 + t}"], R("v", d + 2 * r2, 2))

    PF = 6
    gates = [max(sm_end[0], idx_vw_done), oc_end[0], oc_end[1]]
    for k, (qt, t, s) in enumerate(seq):
        if k == 0:
            for kk in range(PF):
                vt_read(kk)
        q.mfma(("v", OB + 16 * t), ("v", VT + 4 * (k % 8)), ("v", SB[qt] + 4 * s),
               None if s == 0 else ("v", OB + 16 * t))
        if k + PF < len(seq):
            vt_read(k + PF)
        main.append((g.take(), gates[qt]))

    p.ins.extend(pre)
    p.ins.extend(gated_merge(main, fill, 6))
    p.label("L_k1_end")
    p.other("s_endpgm")
    return p


def gen_k2():
    p = Prog()
    S = p.salu
    V = p.valu
    S("s_cmp_ge_u32 s2, 256", ["s2"], ["scc"])
    S("s_cbranch_scc1 L_k2_end", ["scc"])
    S("s_and_b32 s41, s2, 31", ["s2"], ["s41"])
    S("s_lshr_b32 s40, s2, 5", ["s2"], ["s40"])
    S("s_and_b32 s42, s41, 15", ["s41"], ["s42"])
    S("s_lshr_b32 s43, s41, 4", ["s41"], ["s43"])
    S("s_mul_i32 s3, s43, 40", ["s43"], ["s3"])
    S("s_add_u32 s4, s0, s3", ["s0", "s3"], ["s4"])
    S("s_addc_u32 s5, s1, 0", ["s1"], ["s5"])
    p.other("s_load_dwordx2 s[8:9], s[4:5], 32")
    p.other("s_load_dwordx2 s[10:11], s[0:1], 80")
    p.other("s_load_dwordx2 s[16:17], s[0:1], 96")
    V("v_lshrrev_b32 v254, 6, v0", ["v0"], ["v254"])
    V("v_and_b32 v255, 63, v0", ["v0"], ["v255"])
    V("v_readfirstlane_b32 s44, v254", ["v254"], ["s44"])
    p.other("s_waitcnt lgkmcnt(0)")
    S("s_mov_b32 s24, s8", ["s8"], ["s24"])
    S("s_mov_b32 s25, s9", ["s9"], ["s25"])
    S("s_mov_b32 s26, 4194304", [], ["s26"])
    S("s_mov_b32 s27, 0x20000", [], ["s27"])
    S("s_mul_i32 s3, s41, 786432", ["s41"], ["s3"])
    S("s_add_u32 s36, s16, s3", ["s16", "s3"], ["s36"])
    S("s_addc_u32 s37, s17, 0", ["s17"], ["s37"])
    S("s_mov_b32 s38, 786432", [], ["s38"])
    S("s_mov_b32 s39, 0x20000", [], ["s39"])
    S("s_mov_b32 s28, s10", ["s10"], ["s28"])
    S("s_mov_b32 s29, s11", ["s11"], ["s29"])
    S("s_mov_b32 s30, 3145728", [], ["s30"])
    S("s_mov_b32 s31, 0x20000", [], ["s31"])
    S("s_lshl_b32 s46, s44, 15", ["s44"], ["s46"])
    S("s_lshl_b32 s47, s44, 20", ["s44"], ["s47"])
    S("s_lshl_b32 s3, s40, 7", ["s40"], ["s3"])
    S("s_add_u32 s47, s47, s3", ["s47", "s3"], ["s47"])
    S("s_mul_i32 s48, s44, 196608", ["s44"], ["s48"])
    S("s_mul_i32 s49, s42, 196608", ["s42"], ["s49"])
    S("s_lshl_b32 s50, s43, 10", ["s43"], ["s50"])
    S("s_add_u32 s49, s49, s50", ["s49", "s50"], ["s49"])
    S("s_add_u32 s49, s49, s3", ["s49", "s3"], ["s49"])
    S("s_mul_i32 s51, s44, 24576", ["s44"], ["s51"])
    S("s_mul_i32 s52, s44, 6144", ["s44"], ["s52"])
    L = "v255"
    V(f"v_lshrrev_b32 v248, 5, {L}", [L], ["v248"])
    V(f"v_bfe_u32 v249, {L}, 2, 2", [L], ["v249"])
    V(f"v_bfe_u32 v250, {L}, 4, 1", [L], ["v250"])
    V(f"v_and_b32 v251, 1, {L}", [L], ["v251"])
    V(f"v_bfe_u32 v252, {L}, 1, 1", [L], ["v252"])
    V("v_lshl_add_u32 v251, v251, 1, v252", ["v251", "v252"], ["v251"])
    V("v_lshlrev_b32 v251, 3, v251", ["v251"], ["v251"])
    V("v_lshl_add_u32 v251, v250, 5, v251", ["v250", "v251"], ["v251"])
    V("v_lshl_add_u32 v252, v248, 3, v249", ["v248", "v249"], ["v252"])
    V("v_lshl_add_u32 v252, v252, 7, v251", ["v252", "v251"], ["v252"])
    V("v_add_u32 v252, s46, v252", ["s46", "v252"], ["v252"])
    V("v_lshrrev_b32 v250, 1, v249", ["v249"], ["v250"])
    for t in range(2):
        V(f"v_xor_b32 v253, {t}, v250", ["v250"], ["v253"])
        V(f"v_lshl_add_u32 v{232 + t}, v253, 6, v252", ["v253", "v252"], [f"v{232 + t}"])
    V(f"v_lshrrev_b32 v252, 3, {L}", [L], ["v252"])
    V(f"v_and_b32 v253, 7, {L}", [L], ["v253"])
    V(f"v_bfe_u32 v254, {L}, 4, 1", [L], ["v254"])
    V("v_lshlrev_b32 v254, 2, v254", ["v254"], ["v254"])
    V("v_xor_b32 v253, v253, v254", ["v253", "v254"], ["v253"])
    V("v_lshlrev_b32 v253, 4, v253", ["v253"], ["v253"])
    V("v_lshl_add_u32 v240, v252, 10, v253", ["v252", "v253"], ["v240"])
    V(f"v_lshlrev_b32 v242, 4, {L}", [L], ["v242"])
    V("v_add_u32 v243, s51, v242", ["s51", "v242"], ["v243"])
    V("v_add_u32 v244, s52, v242", ["s52", "v242"], ["v244"])
    V("v_add_u32 v245, 49152, v244", ["v244"], ["v245"])
    V(f"v_and_b32 v252, 31, {L}", [L], ["v252"])
    V("v_lshlrev_b32 v252, 11, v252", ["v252"], ["v252"])
    V("v_lshl_add_u32 v241, v248, 4, v252", ["v248", "v252"], ["v241"])

    sidx = [0]

    def stmp():
        sidx[0] = (sidx[0] + 1) % 4
        return f"s{70 + sidx[0]}"

    def w_dma(stg, ns=range(8)):
        for n in ns:
            st = stmp()
            S(f"s_add_u32 m0, s46, {(stg % 4) * 8192 + n * 1024}", ["s46"], ["m0"])
            S(f"s_add_u32 {st}, s47, {(64 * stg + 8 * n) * 1024}", ["s47"], [st])
            p.dma(f"buffer_load_dwordx4 v240, s[24:27], {st} offen lds",
                  ["v240", st] + R("s", 24, 4), tag=("w", stg))

    OD = 8
    OF = 96
    AF = 192

    def o_load(s):
        st = stmp()
        S(f"s_add_u32 {st}, s48, {s * 3072}", ["s48"], [st])
        for qt in range(3):
            d = OF + 12 * (s % OD) + 4 * qt
            p.vload(f"buffer_load_dwordx4 {rng('v', d, 4)}, v242, s[36:39], {st} offen offset:{qt * 1024}",
                    ["v242", st] + R("s", 36, 4), R("v", d, 4))

    def a_read(s):
        stg, ss = s >> 2, s & 3
        for t in range(2):
            for r2 in range(2):
                d = AF + 8 * (s & 1) + 4 * t + 2 * r2
                p.dsr(f"ds_read_b64_tr_b16 {rng('v', d, 2)}, v{232 + t} offset:{(stg % 4) * 8192 + ss * 2048 + r2 * 512}",
                      [f"v{232 + t}"], R("v", d, 2), needs=[("w", stg)])

    NS = 64
    w_dma(0)
    o_load(0)
    o_load(1)
    w_dma(1)
    for s in range(2, OD):
        o_load(s)
    w_dma(2)
    a_read(0)
    for s in range(NS):
        if s + 1 < NS:
            a_read(s + 1)
        for t in range(2):
            for qt in range(3):
                a = 16 * (3 * t + qt)
                p.mfma(("v", a), ("v", AF + 8 * (s & 1) + 4 * t), ("v", OF + 12 * (s % OD) + 4 * qt),
                       None if s == 0 else ("v", a))
        if s + OD < NS:
            o_load(s + OD)
        stg, ss = s >> 2, s & 3
        if stg + 3 < 16:
            w_dma(stg + 3, range(2 * ss, 2 * ss + 2))
    p.barrier()
    for i in range(24):
        p.dsw(f"ds_write_b128 v243, {rng('v', 4 * i, 4)} offset:{i * 1024}", ["v243"] + R("v", 4 * i, 4), tag="red")
    p.barrier(needs=["red"])
    for src in range(4):
        for i in range(6):
            d = 96 + 24 * src + 4 * i
            ar = "v244" if src < 2 else "v245"
            p.dsr(f"ds_read_b128 {rng('v', d, 4)}, {ar} offset:{(src & 1) * 24576 + i * 1024}", [ar], R("v", d, 4))
    for i in range(24):
        V(f"v_add_f32 v{96 + i}, v{96 + i}, v{120 + i}", [f"v{96 + i}", f"v{120 + i}"], [f"v{96 + i}"])
        V(f"v_add_f32 v{144 + i}, v{144 + i}, v{168 + i}", [f"v{144 + i}", f"v{168 + i}"], [f"v{144 + i}"])
        V(f"v_add_f32 v{96 + i}, v{96 + i}, v{144 + i}", [f"v{96 + i}", f"v{144 + i}"], [f"v{96 + i}"])
    for pp in range(12):
        V(f"v_cvt_pk_bf16_f32 v{pp}, v{96 + 2 * pp}, v{97 + 2 * pp}", [f"v{96 + 2 * pp}", f"v{97 + 2 * pp}"], [f"v{pp}"])
    for k in range(3):
        S("s_mul_i32 s3, s44, 3", ["s44"], ["s3"])
        S(f"s_add_u32 s3, s3, {k}", ["s3"], ["s3"])
        S("s_lshr_b32 s53, s3, 1", ["s3"], ["s53"])
        S("s_and_b32 s54, s3, 1", ["s3"], ["s54"])
        S("s_cmp_ge_u32 s53, 3", ["s53"], ["scc"])
        S("s_cselect_b32 s55, 1, 0", ["scc"], ["s55"])
        S("s_mul_i32 s56, s55, 3", ["s55"], ["s56"])
        S("s_sub_u32 s56, s53, s56", ["s53", "s56"], ["s56"])
        S("s_lshl_b32 s56, s56, 16", ["s56"], ["s56"])
        S("s_lshl_b32 s55, s55, 6", ["s55"], ["s55"])
        S("s_lshl_b32 s54, s54, 5", ["s54"], ["s54"])
        S("s_add_u32 s56, s56, s55", ["s56", "s55"], ["s56"])
        S("s_add_u32 s56, s56, s54", ["s56", "s54"], ["s56"])
        S(f"s_add_u32 s{60 + k}, s56, s49", ["s56", "s49"], [f"s{60 + k}"])
        p.vstore(f"buffer_store_dwordx4 {rng('v', 4 * k, 4)}, v241, s[28:31], s{60 + k} offen",
                 R("v", 4 * k, 4) + ["v241", f"s{60 + k}"] + R("s", 28, 4))
    p.label("L_k2_end")
    p.other("s_endpgm")
    return p


HEADER = """; Two-kernel implementation (generated by a hand-written python generator).
; @launch kernel=k1_kernel grid=(256,1,1) block=(256,1,1) lds=163840
; @launch kernel=k2_kernel grid=(256,1,1) block=(256,1,1) lds=131072
.amdgcn_target "amdgcn-amd-amdhsa--gfx950"
.text
"""


def kd(name, nvgpr, accum):
    return f""".amdhsa_kernel {name}
  .amdhsa_next_free_vgpr {nvgpr}
  .amdhsa_next_free_sgpr 96
  .amdhsa_accum_offset {accum}
  .amdhsa_group_segment_fixed_size 0
  .amdhsa_kernarg_size 104
  .amdhsa_user_sgpr_count 2
  .amdhsa_user_sgpr_kernarg_segment_ptr 1
  .amdhsa_system_sgpr_workgroup_id_x 1
.end_amdhsa_kernel
"""


def main():
    t1, i1 = finalize(gen_k1())
    t2, i2 = finalize(gen_k2())
    s = HEADER
    for name, t in (("k1_kernel", t1), ("k2_kernel", t2)):
        s += f".globl {name}\n.p2align 8\n.type {name},@function\n{name}:\n{t}"
    s += '.section .rodata,"a"\n.p2align 6\n'
    s += kd("k1_kernel", 448, 256)
    s += ".p2align 6\n"
    s += kd("k2_kernel", 256, 256)
    open(OUT, "w").write(s)
    print("k1 instrs", len(i1), "k2 instrs", len(i2))


if __name__ == "__main__":
    main()
```

```python
import re


def R(prefix, base, n=1):
    return [f"{prefix}{base + i}" for i in range(n)]


def rng(prefix, base, n):
    if n == 1:
        return f"{prefix}{base}"
    return f"{prefix}[{base}:{base + n - 1}]"


class I:
    __slots__ = ("text", "kind", "rd", "wr", "needs", "tag", "c", "ab", "cnt", "np")

    def __init__(self, text, kind, rd=(), wr=(), needs=(), tag=None, c=(), ab=(), cnt=None, np=8):
        self.text = text
        self.kind = kind
        self.rd = frozenset(rd)
        self.wr = frozenset(wr)
        self.needs = tuple(needs)
        self.tag = tag
        self.c = tuple(c)
        self.ab = frozenset(ab)
        self.cnt = cnt
        self.np = np


class Prog:
    def __init__(self):
        self.ins = []

    def add(self, i):
        self.ins.append(i)
        return i

    def salu(self, text, rd=(), wr=()):
        return self.add(I(text, "salu", rd, wr))

    def valu(self, text, rd=(), wr=()):
        return self.add(I(text, "valu", rd, wr))

    def trans(self, text, rd=(), wr=()):
        return self.add(I(text, "trans", rd, wr))

    def perm(self, text, rd=(), wr=()):
        return self.add(I(text, "perm", rd, wr))

    def other(self, text, needs=()):
        return self.add(I(text, "other", needs=needs))

    def barrier(self, needs=()):
        return self.add(I("s_barrier", "bar", needs=needs))

    def label(self, name):
        return self.add(I(name + ":", "label"))

    def waitall(self):
        return self.add(I("s_waitcnt vmcnt(0) lgkmcnt(0)", "waitall"))

    def mfma(self, d, a, b, c, needs=()):
        dp, db = d
        ap, ab_ = a
        bp, bb = b
        dregs = R(dp, db, 16)
        aregs = R(ap, ab_, 4)
        bregs = R(bp, bb, 4)
        if c is None:
            ctext = "0"
            cregs = []
        else:
            cregs = R(c[0], c[1], 16)
            ctext = rng(c[0], c[1], 16)
        t = f"v_mfma_f32_32x32x16_bf16 {rng(dp, db, 16)}, {rng(ap, ab_, 4)}, {rng(bp, bb, 4)}, {ctext}"
        return self.add(I(t, "mfma", aregs + bregs + cregs, dregs, needs=needs, c=cregs, ab=aregs + bregs))

    def mfma16(self, d, a, b, c, needs=()):
        dp, db = d
        ap, ab_ = a
        bp, bb = b
        dregs = R(dp, db, 4)
        aregs = R(ap, ab_, 4)
        bregs = R(bp, bb, 4)
        if c is None:
            ctext = "0"
            cregs = []
        else:
            cregs = R(c[0], c[1], 4)
            ctext = rng(c[0], c[1], 4)
        t = f"v_mfma_f32_16x16x32_bf16 {rng(dp, db, 4)}, {rng(ap, ab_, 4)}, {rng(bp, bb, 4)}, {ctext}"
        return self.add(I(t, "mfma", aregs + bregs + cregs, dregs, needs=needs, c=cregs, ab=aregs + bregs, np=4))

    def vload(self, text, rd, wr, tag=None, needs=()):
        return self.add(I(text, "vload", rd, wr, tag=tag, cnt="vm", needs=needs))

    def vstore(self, text, rd, tag=None, needs=()):
        return self.add(I(text, "vstore", rd, (), tag=tag, cnt="vm", needs=needs))

    def dma(self, text, rd, tag=None, needs=()):
        return self.add(I(text, "dma", list(rd) + ["m0"], (), tag=tag, cnt="vm", needs=needs))

    def dsr(self, text, rd, wr, tag=None, needs=()):
        return self.add(I(text, "dsr", rd, wr, tag=tag, cnt="lg", needs=needs))

    def dsw(self, text, rd, tag=None, needs=()):
        return self.add(I(text, "dsw", rd, (), tag=tag, cnt="lg", needs=needs))


def waitcnt_pass(ins):
    out = []
    q = {"vm": [], "lg": []}
    maxc = {"vm": 63, "lg": 15}
    for it in ins:
        if it.kind == "waitall":
            q["vm"].clear()
            q["lg"].clear()
            out.append(it)
            continue
        if it.kind == "label":
            out.append(it)
            continue
        want = {}
        touched = it.rd | it.wr
        for c in ("vm", "lg"):
            last = -1
            for p, op in enumerate(q[c]):
                if (op.wr & touched) or (op.tag is not None and op.tag in it.needs):
                    last = p
                elif op.kind in ("vstore", "dsw") and (op.rd & it.wr):
                    last = p
            if last >= 0:
                want[c] = len(q[c]) - 1 - last
        if it.cnt is not None and len(q[it.cnt]) + 1 > maxc[it.cnt]:
            n = maxc[it.cnt] - 1
            want[it.cnt] = min(want.get(it.cnt, n), n)
        if want:
            parts = []
            for c, name in (("vm", "vmcnt"), ("lg", "lgkmcnt")):
                if c in want:
                    n = want[c]
                    parts.append(f"{name}({n})")
                    q[c] = q[c][len(q[c]) - n:] if n > 0 else []
            out.append(I("s_waitcnt " + " ".join(parts), "wait"))
        out.append(it)
        if it.cnt is not None:
            q[it.cnt].append(it)
    return out


def states_of(it):
    if it.kind == "label":
        return 0
    if it.kind == "nop":
        return int(it.text.split()[1]) + 1
    return 1


def is_vec_reg(r):
    return r[0] in "va" and r[1:].isdigit()


def hazard_need(p, c):
    need = 0
    pk, ck = p.kind, c.kind
    valu_like = ("valu", "trans", "perm")
    if pk in valu_like:
        vw = {r for r in p.wr if is_vec_reg(r)}
        sw = {r for r in p.wr if not is_vec_reg(r)}
        if ck == "mfma" and (vw & c.rd):
            need = max(need, 2)
        if ck == "perm" and (vw & c.rd):
            need = max(need, 2)
        if pk == "trans" and ck in valu_like and (vw & c.rd):
            need = max(need, 1)
        if "readfirstlane" in c.text and (vw & c.rd):
            need = max(need, 1)
        if sw:
            if ck in ("vload", "vstore", "dma") and (sw & c.rd):
                need = max(need, 5)
            if ck in valu_like and (sw & c.rd):
                need = max(need, 2)
            if ck == "salu" and (sw & c.rd):
                need = max(need, 2)
    if pk == "mfma":
        d = p.wr
        n_rd = {4: 8, 8: 12}[p.np]
        n_ov = {4: 6, 8: 10}[p.np]
        n_war = {4: 3, 8: 7}[p.np]
        if ck == "mfma":
            if d & c.ab:
                need = max(need, n_rd)
            cc = frozenset(c.c)
            if d & cc and cc != d:
                need = max(need, n_ov)
            if d & c.wr and c.wr != d:
                need = max(need, n_rd)
            if d & c.wr and not c.c:
                need = max(need, n_rd)
        elif ck in valu_like + ("vload", "vstore", "dma", "dsr", "dsw"):
            if d & (c.rd | c.wr):
                need = max(need, n_rd)
        if ck in valu_like and (frozenset(p.c) & c.wr):
            need = max(need, n_war)
    if pk == "salu" and "m0" in p.wr and ck == "dma":
        need = max(need, 1)
    if pk == "vstore" and ck in valu_like and (p.rd & c.wr):
        need = max(need, 2)
    return need


def hazard_pass(ins):
    out = []
    for it in ins:
        if it.kind == "label":
            out.append(it)
            continue
        dist = 0
        pad = 0
        for p in reversed(out):
            if p.kind == "label":
                break
            if dist >= 13:
                break
            n = hazard_need(p, it)
            if n > dist:
                pad = max(pad, n - dist)
            dist += states_of(p)
        while pad > 0:
            k = min(pad, 16)
            out.append(I(f"s_nop {k - 1}", "nop"))
            pad -= k
        out.append(it)
    return out


def finalize(prog):
    ins = waitcnt_pass(prog.ins)
    ins = hazard_pass(ins)
    lines = []
    for it in ins:
        if it.kind == "label":
            lines.append(it.text)
        else:
            lines.append("    " + it.text)
    return "\n".join(lines) + "\n", ins


def merge(main, fill, ratio_num, ratio_den=1, start=0):
    out = []
    fi = 0
    acc = 0
    for k, m in enumerate(main):
        out.extend(m)
        if k < start:
            continue
        acc += ratio_num
        while acc >= ratio_den and fi < len(fill):
            out.extend(fill[fi])
            fi += 1
            acc -= ratio_den
    while fi < len(fill):
        out.extend(fill[fi])
        fi += 1
    return out
```

```python
import math
import struct
import sys

sys.path.insert(0, "work")
from asmgen import *

NAME = "concat_heads__gqa_block_cached__gqa_block_cached__near_ridge"
OUT = f"cdna_kernels/{NAME}.s"
PROF = len(sys.argv) > 1 and sys.argv[1] == "prof"
FLAGS = set(sys.argv[2:])
if PROF:
    OUT = "prof%s.s" % "".join(sys.argv[2:])


def f32bits(x):
    return struct.unpack("<I", struct.pack("<f", x))[0]


def stamp(p, idx):
    if PROF:
        p.other(f"s_memtime s[{80 + 2 * idx}:{81 + 2 * idx}]")
        p.other("s_waitcnt lgkmcnt(0)")


def dump_stamps(p, n, wgs=(0, 9, 100, 255)):
    if not PROF:
        return
    p.other("s_load_dwordx2 s[76:77], s[0:1], 88")
    p.other("s_waitcnt lgkmcnt(0)")
    p.salu("s_mov_b32 s78, 256", [], ["s78"])
    p.salu("s_mov_b32 s79, 0x20000", [], ["s79"])
    p.salu("s_cmp_lg_u32 s44, 0", ["s44"], ["scc"])
    lab = f"L_nost_{id(p)}"
    p.salu(f"s_cbranch_scc1 {lab}", ["scc"])
    for k, wg in enumerate(wgs):
        l2 = f"L_st_{id(p)}_{k}"
        p.salu(f"s_cmp_lg_u32 s2, {wg}", ["s2"], ["scc"])
        p.salu(f"s_cbranch_scc1 {l2}", ["scc"])
        for i in range(n):
            p.salu(f"s_sub_u32 s3, s{80 + 2 * i}, s80", [f"s{80 + 2 * i}", "s80"], ["s3"])
            p.valu("v_mov_b32 v250, s3", ["s3"], ["v250"])
            p.valu(f"v_mov_b32 v251, {(k * 8 + i) * 4}", [], ["v251"])
            p.vstore("buffer_store_dword v250, v251, s[76:79], 0 offen", ["v250", "v251"] + R("s", 76, 4))
            p.waitall()
        p.label(l2)
    p.label(lab)


class G:
    def __init__(self):
        self.p = Prog()

    def take(self):
        r = self.p.ins
        self.p.ins = []
        return r


def gated_merge(main, fill, ratio):
    out = []
    mi = fi = 0
    while mi < len(main) or fi < len(fill):
        progressed = False
        if mi < len(main) and main[mi][1] < fi:
            out.extend(main[mi][0])
            mi += 1
            progressed = True
            k = 0
            while k < ratio and fi < len(fill) and fill[fi][1] < mi:
                out.extend(fill[fi][0])
                fi += 1
                k += 1
        else:
            if fi < len(fill) and fill[fi][1] < mi:
                out.extend(fill[fi][0])
                fi += 1
                progressed = True
        assert progressed, (mi, fi)
    return out


def spread(mf, fl):
    out = []
    n, m = len(mf), len(fl)
    k = 0
    for i, x in enumerate(mf):
        out.extend(x)
        tgt = ((i + 1) * m + n - 1) // n
        while k < min(tgt, m):
            out.extend(fl[k])
            k += 1
    return out


def gen_k1():
    p = Prog()
    S = p.salu
    V = p.valu
    g = G()
    q = g.p
    S("s_cmp_ge_u32 s2, 256", ["s2"], ["scc"])
    S("s_cbranch_scc1 L_k1_end", ["scc"])
    S("s_and_b32 s46, s2, 7", ["s2"], ["s46"])
    S("s_lshr_b32 s47, s2, 3", ["s2"], ["s47"])
    S("s_and_b32 s48, s47, 15", ["s47"], ["s48"])
    S("s_lshr_b32 s49, s47, 4", ["s47"], ["s49"])
    S("s_mul_i32 s3, s49, 40", ["s49"], ["s3"])
    S("s_add_u32 s4, s0, s3", ["s0", "s3"], ["s4"])
    S("s_addc_u32 s5, s1, 0", ["s1"], ["s5"])
    p.other("s_load_dwordx8 s[8:15], s[4:5], 0")
    p.other("s_load_dwordx2 s[18:19], s[4:5], 32")
    p.other("s_load_dwordx2 s[16:17], s[0:1], 96")
    V("v_lshrrev_b32 v254, 6, v0", ["v0"], ["v254"])
    V("v_and_b32 v255, 63, v0", ["v0"], ["v255"])
    V("v_readfirstlane_b32 s44, v254", ["v254"], ["s44"])
    S("s_lshl_b32 s45, s46, 2", ["s46"], ["s45"])
    S("s_add_u32 s45, s45, s44", ["s45", "s44"], ["s45"])
    for s_ in range(1, 8):
        S(f"s_mov_b32 s{50 + s_}, {s_ * 8192}", [], [f"s{50 + s_}"])
    for kt in range(1, 6):
        S(f"s_mov_b32 s{58 + kt}, {kt * 4096}", [], [f"s{58 + kt}"])
    cexp = (128.0 ** -0.5) * math.log2(math.e)
    S(f"s_mov_b32 s64, {f32bits(cexp):#x}", [], ["s64"])
    S("s_mov_b32 s65, 0x05040100", [], ["s65"])
    S("s_mov_b32 s66, 0x07060302", [], ["s66"])
    S("s_lshl_b32 s67, s44, 11", ["s44"], ["s67"])

    def sR(s_):
        return "0" if s_ == 0 else f"s{50 + s_}"

    def sK(kt):
        return "0" if kt == 0 else f"s{58 + kt}"

    L = "v255"
    V(f"v_lshrrev_b32 v248, 4, {L}", [L], ["v248"])
    V(f"v_and_b32 v249, 15, {L}", [L], ["v249"])
    V("v_and_b32 v250, 3, v249", ["v249"], ["v250"])
    V("v_lshrrev_b32 v251, 2, v249", ["v249"], ["v251"])
    V("v_lshl_add_u32 v250, v250, 2, v251", ["v250", "v251"], ["v250"])
    V("v_lshlrev_b32 v250, 4, v250", ["v250"], ["v250"])
    vW, vK, vV = "v224", "v225", "v226"
    vXd = ["v227", "v228"]
    vXr = [["v229", "v230"], ["v231", "v232"]]
    vWo, vOw, vOr, vSt = "v252", "v253", "v254", "v253"
    V(f"v_lshl_add_u32 {vW}, v248, 16, v250", ["v248", "v250"], [vW])
    V(f"v_lshl_add_u32 {vV}, v248, 10, v250", ["v248", "v250"], [vV])
    V("v_lshlrev_b32 v251, 4, v248", ["v248"], ["v251"])
    V(f"v_lshl_add_u32 {vK}, v249, 8, v251", ["v249", "v251"], [vK])
    S("s_lshl_b32 s3, s44, 1", ["s44"], ["s3"])
    for c in range(2):
        S(f"s_add_u32 s70, s3, {c}", ["s3"], ["s70"])
        V(f"v_xor_b32 v251, s70, {L}", ["s70", L], ["v251"])
        V("v_lshlrev_b32 v251, 4, v251", ["v251"], ["v251"])
        V(f"v_add_u32 {vXd[c]}, s67, v251", ["s67", "v251"], [vXd[c]])
    p.other("s_waitcnt lgkmcnt(0)")
    S("s_mul_i32 s3, s48, 98304", ["s48"], ["s3"])
    S("s_add_u32 s20, s8, s3", ["s8", "s3"], ["s20"])
    S("s_addc_u32 s21, s9, 0", ["s9"], ["s21"])
    S("s_mov_b32 s22, 98304", [], ["s22"])
    S("s_mov_b32 s23, 0x20000", [], ["s23"])
    S("s_lshl_b32 s3, s45, 8", ["s45"], ["s3"])
    S("s_add_u32 s24, s14, s3", ["s14", "s3"], ["s24"])
    S("s_addc_u32 s25, s15, 0", ["s15"], ["s25"])
    S("s_mov_b32 s26, 262144", [], ["s26"])
    S("s_mov_b32 s27, 0x20000", [], ["s27"])

    RING = [0, 32, 64, 96]
    BF = 128
    T = 176
    KV = 192

    def w_loads(dst, first):
        out = []
        if not first:
            q.salu("s_add_u32 s24, s24, 262144", ["s24"], ["s24"])
            q.salu("s_addc_u32 s25, s25, 0", ["s25"], ["s25"])
        for s_ in range(8):
            so = sR(s_)
            q.vload(f"buffer_load_dwordx4 {rng('v', dst + 4 * s_, 4)}, {vW}, s[24:27], {so} offen",
                    [vW] + R("s", 24, 4) + ([so] if s_ else []), R("v", dst + 4 * s_, 4))
            out.append(g.take())
        return out

    def kfrag(kt, r):
        n = kt * 4 + r
        return ("a", 192 + 4 * n) if n < 16 else ("v", KV + 4 * (n - 16))

    stamp(p, 0)
    for it in w_loads(RING[0], True):
        p.ins.extend(it)
    for m in range(12):
        for c in range(2):
            off = (8 * m + c) * 1024
            S(f"s_add_u32 m0, s67, {off}", ["s67"], ["m0"])
            S(f"s_mov_b32 s70, {off}", [], ["s70"])
            p.dma(f"buffer_load_dwordx4 {vXd[c]}, s[20:23], s70 offen lds", [vXd[c], "s70"] + R("s", 20, 4), tag="x")
    for st in range(1, 4):
        for it in w_loads(RING[st], False):
            p.ins.extend(it)
    S("s_lshl_b32 s3, s48, 5", ["s48"], ["s3"])
    S("s_add_u32 s3, s3, s45", ["s3", "s45"], ["s3"])
    S("s_mul_i32 s3, s3, 24576", ["s3"], ["s3"])
    S("s_add_u32 s28, s10, s3", ["s10", "s3"], ["s28"])
    S("s_addc_u32 s29, s11, 0", ["s11"], ["s29"])
    S("s_mov_b32 s30, 24576", [], ["s30"])
    S("s_mov_b32 s31, 0x20000", [], ["s31"])
    S("s_add_u32 s32, s12, s3", ["s12", "s3"], ["s32"])
    S("s_addc_u32 s33, s13, 0", ["s13"], ["s33"])
    S("s_mov_b32 s34, 24576", [], ["s34"])
    S("s_mov_b32 s35, 0x20000", [], ["s35"])
    S("s_lshl_b32 s3, s47, 3", ["s47"], ["s3"])
    S("s_add_u32 s3, s3, s46", ["s3", "s46"], ["s3"])
    S("s_mul_i32 s3, s3, 98304", ["s3"], ["s3"])
    S("s_add_u32 s36, s16, s3", ["s16", "s3"], ["s36"])
    S("s_addc_u32 s37, s17, 0", ["s17"], ["s37"])
    S("s_mov_b32 s38, 98304", [], ["s38"])
    S("s_mov_b32 s39, 0x20000", [], ["s39"])
    S("s_lshl_b32 s3, s46, 19", ["s46"], ["s3"])
    S("s_add_u32 s40, s18, s3", ["s18", "s3"], ["s40"])
    S("s_addc_u32 s41, s19, 0", ["s19"], ["s41"])
    S("s_mov_b32 s42, 32768", [], ["s42"])
    S("s_mov_b32 s43, 0x20000", [], ["s43"])
    V("v_and_b32 v250, 7, v249", ["v249"], ["v250"])
    V("v_lshlrev_b32 v251, 10, v249", ["v249"], ["v251"])
    for par in range(2):
        V(f"v_add_u32 v246, {4 * par}, v248", ["v248"], ["v246"])
        V("v_xor_b32 v246, v246, v250", ["v246", "v250"], ["v246"])
        V(f"v_lshl_add_u32 {vXr[par][0]}, v246, 4, v251", ["v246", "v251"], [vXr[par][0]])
        V(f"v_add_u32 {vXr[par][1]}, 49152, {vXr[par][0]}", [vXr[par][0]], [vXr[par][1]])
    S("s_mul_i32 s3, s44, 24576", ["s44"], ["s3"])
    V(f"v_lshlrev_b32 {vOr}, 4, {L}", [L], [vOr])
    V(f"v_add_u32 {vOw}, s3, {vOr}", ["s3", vOr], [vOw])
    S("s_lshl_b32 s3, s44, 8", ["s44"], ["s3"])
    V("v_lshlrev_b32 v251, 4, v249", ["v249"], ["v251"])
    V(f"v_lshl_add_u32 {vWo}, v248, 13, v251", ["v248", "v251"], [vWo])
    V(f"v_add_u32 {vWo}, s3, {vWo}", ["s3", vWo], [vWo])

    def acc(j, qt):
        return ("a", (qt * 8 + j) * 4)

    def perms(raw, m, tdst):
        out = []
        for hi in range(2):
            for pp in range(4):
                a = raw + 4 * (2 * pp) + m
                b = raw + 4 * (2 * pp + 1) + m
                d = tdst + 4 * hi + pp
                sel = "s66" if hi else "s65"
                q.valu(f"v_perm_b32 v{d}, v{b}, v{a}, {sel}", [f"v{a}", f"v{b}", sel], [f"v{d}"])
                out.append(g.take())
        return out

    def x_reads(step, bf):
        out = []
        for qt in range(6):
            ar = vXr[step & 1][qt // 3]
            d = bf + 4 * qt
            q.dsr(f"ds_read_b128 {rng('v', d, 4)}, {ar} offset:{(step >> 1) * 128 + (qt % 3) * 16384}",
                  [ar], R("v", d, 4))
            out.append(g.take())
        return out

    def gemm(ring, bfb, tb, b_reads, next_loads, pre_done=False, stamps=None):
        if not pre_done:
            for it in b_reads(0, bfb):
                p.ins.extend(it)
        for it in perms(ring[0], 0, tb):
            p.ins.extend(it)
        for s_ in range(16):
            bf = bfb + 24 * (s_ & 1)
            for m in range(4):
                tcur = tb + 8 * (m & 1)
                tnext = tb + 8 * ((m + 1) & 1)
                mf = []
                for qt in range(6):
                    for jj in range(2):
                        q.mfma16(acc(2 * m + jj, qt), ("v", tcur + 4 * jj), ("v", bf + 4 * qt),
                                 None if s_ == 0 else acc(2 * m + jj, qt))
                        mf.append(g.take())
                fl = []
                if m < 3:
                    fl += perms(ring[s_ % 4], m + 1, tnext)
                elif s_ + 1 < 16:
                    fl += perms(ring[(s_ + 1) % 4], 0, tnext)
                if m == 0 and s_ + 1 < 16:
                    fl += b_reads(s_ + 1, bfb + 24 * ((s_ + 1) & 1))
                if m == 3:
                    fl = next_loads(s_) + fl
                p.ins.extend(spread(mf, fl))
            if stamps and s_ in stamps:
                stamp(p, stamps[s_])

    def v_loads(u, dst):
        out = []
        for s_ in range(8):
            so = sK(2 * u + (s_ >> 2))
            q.vload(f"buffer_load_dwordx4 {rng('v', dst + 4 * s_, 4)}, {vV}, s[32:35], {so} offen offset:{(s_ & 3) * 256}",
                    [vV] + R("s", 32, 4) + ([so] if so != "0" else []), R("v", dst + 4 * s_, 4))
            out.append(g.take())
        return out

    def k_loads(ns):
        out = []
        for n in ns:
            kt, r = n >> 2, n & 3
            pf, b0 = kfrag(kt, r)
            so = sK(kt)
            q.vload(f"buffer_load_dwordx4 {rng(pf, b0, 4)}, {vK}, s[28:31], {so} offen offset:{r * 64}",
                    [vK] + R("s", 28, 4) + ([so] if kt else []), R(pf, b0, 4))
            out.append(g.take())
        return out

    def v_dma(ns):
        out = []
        for n in ns:
            u, s_ = n >> 3, n & 7
            so = sK(2 * u + (s_ >> 2))
            q.salu(f"s_add_u32 m0, s68, {n * 1024 - (s_ & 3) * 256}", ["s68"], ["m0"])
            q.dma(f"buffer_load_dwordx4 {vV}, s[32:35], {so} offen offset:{(s_ & 3) * 256} lds",
                  [vV] + R("s", 32, 4) + ([so] if so != "0" else []), tag="vd")
            out.append(g.take())
        return out

    def next_a(s_):
        out = []
        if s_ + 4 < 16 and "nold" not in FLAGS:
            out += w_loads(RING[s_ % 4], False)
        if s_ < 8:
            out += k_loads(range(3 * s_, 3 * s_ + 3))
        elif s_ < 12:
            out += v_dma(range(4 * (s_ - 8), 4 * (s_ - 8) + 4))
        elif s_ == 14:
            out += v_loads(2, RING[2])
        return out

    S("s_lshl_b32 s68, s44, 14", ["s44"], ["s68"])
    S("s_add_u32 s68, s68, 98304", ["s68"], ["s68"])
    S("s_lshl_b32 s69, s48, 5", ["s48"], ["s69"])
    S("s_lshl_b32 s3, s44, 3", ["s44"], ["s3"])
    S("s_add_u32 s69, s69, s3", ["s69", "s3"], ["s69"])
    S("s_lshl_b32 s3, s69, 13", ["s69"], ["s3"])
    S("s_lshl_b32 s70, s46, 10", ["s46"], ["s70"])
    S("s_add_u32 s3, s3, s70", ["s3", "s70"], ["s3"])
    S("s_add_u32 s72, s14, s3", ["s14", "s3"], ["s72"])
    S("s_addc_u32 s73, s15, 0", ["s15"], ["s73"])
    S("s_mov_b32 s74, 65536", [], ["s74"])
    S("s_mov_b32 s75, 0x20000", [], ["s75"])
    S("s_mov_b32 m0, s68", ["s68"], ["m0"])
    if "notouch" not in FLAGS:
        for r in range(8):
            so = sR(r)
            p.dma(f"buffer_load_dwordx4 {vOr}, s[72:75], {so} offen lds", [vOr] + R("s", 72, 4) + ([so] if r else []))
    S("s_lshl_b32 s3, s69, 10", ["s69"], ["s3"])
    S("s_add_u32 s72, s40, s3", ["s40", "s3"], ["s72"])
    S("s_addc_u32 s73, s41, 0", ["s41"], ["s73"])
    p.barrier(needs=["x"])
    stamp(p, 1)
    gemm(RING, BF, T, x_reads, next_a, stamps={3: 2, 9: 3})
    stamp(p, 4)
    p.barrier()

    QF = 176
    SACC = [128, 152]
    PB = 224
    STG = 236
    TMP = 244
    VT = [RING[3], RING[0], RING[1]]
    main = []
    fill = []

    def one(gate):
        for i in g.take():
            fill.append(([i], gate))

    def conv(qt, r, dst, gate):
        for jj in range(4):
            t0, t1 = TMP + 2 * (jj & 1), TMP + 2 * (jj & 1) + 1
            a0 = acc(2 * jj, qt)[1] + r
            a1 = acc(2 * jj + 1, qt)[1] + r
            q.valu(f"v_accvgpr_read_b32 v{t0}, a{a0}", [f"a{a0}"], [f"v{t0}"])
            q.valu(f"v_accvgpr_read_b32 v{t1}, a{a1}", [f"a{a1}"], [f"v{t1}"])
            q.valu(f"v_cvt_pk_bf16_f32 v{dst + jj}, v{t0}, v{t1}", [f"v{t0}", f"v{t1}"], [f"v{dst + jj}"])
        one(gate)

    order = ["S0", "S1", "S2", "P0", "S3", "P1", "S4", "P2", "S5", "P3", "P4", "P5"]
    mstart = {nm: 24 * k for k, nm in enumerate(order)}

    def s_part_end(qt, r):
        return mstart[f"S{qt}"] + 6 * r + 5

    def m_end(nm):
        return mstart[nm] + 23

    fidx = {}

    def C(qt):
        for r in range(4):
            gate = -1 if qt == 0 else s_part_end(qt - 1, r)
            conv(qt, r, QF + 4 * r, gate)
            fidx[("C", qt, r)] = len(fill) - 1

    def M(qt):
        b = SACC[qt & 1]
        v = [f"v{b + i}" for i in range(24)]
        gate = min(m_end(f"S{qt}") + 2, 24 * 12 - 1)
        q.valu(f"v_max3_f32 v248, {v[0]}, {v[1]}, {v[2]}", v[0:3], ["v248"])
        i = 3
        while i < 24:
            j = min(i + 1, 23)
            q.valu(f"v_max3_f32 v248, v248, {v[i]}, {v[j]}", ["v248", v[i], v[j]], ["v248"])
            i += 2
        q.valu("v_mov_b32 v249, v248", ["v248"], ["v249"])
        q.perm("v_permlane32_swap_b32 v248, v249", ["v248", "v249"], ["v248", "v249"])
        q.valu("v_max_f32 v248, v248, v249", ["v248", "v249"], ["v248"])
        q.valu("v_mov_b32 v249, v248", ["v248"], ["v249"])
        q.perm("v_permlane16_swap_b32 v248, v249", ["v248", "v249"], ["v248", "v249"])
        q.valu("v_max_f32 v248, v248, v249", ["v248", "v249"], ["v248"])
        q.valu("v_mul_f32 v248, s64, v248", ["s64", "v248"], ["v248"])
        for i in range(24):
            q.valu(f"v_fma_f32 {v[i]}, {v[i]}, s64, -v248", [v[i], "s64", "v248"], [v[i]])
            q.trans(f"v_exp_f32 {v[i]}, {v[i]}", [v[i]], [v[i]])
        q.valu(f"v_add_f32 v250, {v[0]}, {v[1]}", [v[0], v[1]], ["v250"])
        q.valu(f"v_add_f32 v251, {v[2]}, {v[3]}", [v[2], v[3]], ["v251"])
        for i in range(4, 24):
            t = "v250" if i & 1 else "v251"
            q.valu(f"v_add_f32 {t}, {t}, {v[i]}", [t, v[i]], [t])
        q.valu("v_add_f32 v250, v250, v251", ["v250", "v251"], ["v250"])
        q.valu("v_mov_b32 v251, v250", ["v250"], ["v251"])
        q.perm("v_permlane32_swap_b32 v250, v251", ["v250", "v251"], ["v250", "v251"])
        q.valu("v_add_f32 v250, v250, v251", ["v250", "v251"], ["v250"])
        q.valu("v_mov_b32 v251, v250", ["v250"], ["v251"])
        q.perm("v_permlane16_swap_b32 v250, v251", ["v250", "v251"], ["v250", "v251"])
        q.valu("v_add_f32 v250, v250, v251", ["v250", "v251"], ["v250"])
        q.trans("v_rcp_f32 v250, v250", ["v250"], ["v250"])
        for i in range(24):
            q.valu(f"v_mul_f32 {v[i]}, {v[i]}, v250", [v[i], "v250"], [v[i]])
        one(gate)
        gate2 = gate if qt == 0 else max(gate, m_end(f"P{qt - 1}"))
        for pp in range(12):
            q.valu(f"v_cvt_pk_bf16_f32 v{PB + pp}, {v[2 * pp]}, {v[2 * pp + 1]}", [v[2 * pp], v[2 * pp + 1]], [f"v{PB + pp}"])
        one(gate2)
        fidx[("M", qt)] = len(fill) - 1

    def VP():
        q.valu(f"v_add_u32 v248, s68, {vOr}", ["s68", vOr], ["v248"])
        for n in range(16):
            d = RING[n >> 3] + 4 * (n & 7)
            q.dsr(f"ds_read_b128 {rng('v', d, 4)}, v248 offset:{n * 1024}", ["v248"], R("v", d, 4), needs=["vd"], tag="vr")
        one(-1)
        if "notouch" not in FLAGS:
            q.salu("s_mov_b32 m0, s68", ["s68"], ["m0"])
            for r in range(8):
                so = "s59" if r >= 4 else "0"
                q.dma(f"buffer_load_dwordx4 {vOr}, s[72:75], {so} offen offset:{(r & 3) * 1024} lds",
                      [vOr] + R("s", 72, 4) + ([so] if r >= 4 else []), needs=["vr"])
            one(-1)
        for u in range(3):
            for m in range(4):
                for it in perms(RING[u], m, VT[u] + 8 * m):
                    fill.append((it, -1))
        fidx["VP"] = len(fill) - 1

    def OC(qt):
        gate = min(m_end(f"P{qt}") + 2, 24 * 12 - 1)
        for r in range(4):
            d = STG + 4 * (r & 1)
            conv(qt, r, d, gate)
            q.dsw(f"ds_write_b128 {vOw}, {rng('v', d, 4)} offset:{(r * 6 + qt) * 1024}", [vOw] + R("v", d, 4), tag="o")
            one(gate)

    RINGC = [RING[2], KV, 128, RING[3]]
    BFC = 0
    TC = 48

    def wo_loads(dst, first):
        out = []
        if not first:
            q.salu("s_add_u32 s40, s40, 32768", ["s40"], ["s40"])
            q.salu("s_addc_u32 s41, s41, 0", ["s41"], ["s41"])
        for s_ in range(8):
            so = "s59" if s_ >= 4 else "0"
            q.vload(f"buffer_load_dwordx4 {rng('v', dst + 4 * s_, 4)}, {vWo}, s[40:43], {so} offen offset:{(s_ & 3) * 1024}",
                    [vWo] + R("s", 40, 4) + ([so] if s_ >= 4 else []), R("v", dst + 4 * s_, 4))
            out.append(g.take())
        return out

    def WO(k, gate):
        for it in wo_loads(RINGC[k], k == 0):
            fill.append((it, gate))

    C(0); C(1); M(0); C(2); VP(); WO(0, -1); M(1); C(3); OC(0); M(2); C(4); OC(1); M(3); C(5)
    WO(1, m_end("S5")); OC(2); M(4); OC(3); M(5); WO(2, -1); OC(4); WO(3, m_end("P5")); OC(5)

    for nm in order:
        qt = int(nm[1])
        if nm[0] == "S":
            for r in range(4):
                gate = fidx[("C", qt, r)]
                if qt >= 2:
                    gate = max(gate, fidx[("M", qt - 2)])
                for kt in range(6):
                    d = ("v", SACC[qt & 1] + 4 * kt)
                    q.mfma16(d, kfrag(kt, r), ("v", QF + 4 * r), None if r == 0 else d)
                    main.append((g.take(), gate))
        else:
            gate = max(fidx[("M", qt)], fidx["VP"])
            for u in range(3):
                for j in range(8):
                    q.mfma16(acc(j, qt), ("v", VT[u] + 4 * j), ("v", PB + 4 * u), None if u == 0 else acc(j, qt))
                    main.append((g.take(), gate))
    p.ins.extend(gated_merge(main, fill, 5))
    stamp(p, 5)
    p.barrier(needs=["o"])

    V(f"v_add_u32 v224, 49152, {vOr}", [vOr], ["v224"])

    def o_reads(step, bf):
        out = []
        for qt in range(6):
            n = step * 6 + qt
            ar = vOr if n < 48 else "v224"
            d = bf + 4 * qt
            q.dsr(f"ds_read_b128 {rng('v', d, 4)}, {ar} offset:{(n % 48) * 1024}", [ar], R("v", d, 4))
            out.append(g.take())
        return out

    def next_c(s_):
        if s_ + 4 < 16 and "nold" not in FLAGS:
            return wo_loads(RINGC[s_ % 4], False)
        return []

    gemm(RINGC, BFC, TC, o_reads, next_c)
    stamp(p, 6)
    k = 0
    for qt in range(6):
        for r in range(4):
            d = 64 + 4 * (k % 16)
            k += 1
            for jj in range(4):
                t0 = 228 + 2 * jj
                a0 = acc(2 * jj, qt)[1] + r
                a1 = acc(2 * jj + 1, qt)[1] + r
                V(f"v_accvgpr_read_b32 v{t0}, a{a0}", [f"a{a0}"], [f"v{t0}"])
                V(f"v_accvgpr_read_b32 v{t0 + 1}, a{a1}", [f"a{a1}"], [f"v{t0 + 1}"])
                V(f"v_cvt_pk_bf16_f32 v{d + jj}, v{t0}, v{t0 + 1}", [f"v{t0}", f"v{t0 + 1}"], [f"v{d + jj}"])
            so = sK(qt)
            p.vstore(f"buffer_store_dwordx4 {rng('v', d, 4)}, {vSt}, s[36:39], {so} offen offset:{r * 1024}",
                     R("v", d, 4) + [vSt] + R("s", 36, 4) + ([so] if qt else []))
    if PROF:
        p.waitall()
    stamp(p, 7)
    dump_stamps(p, 8)
    p.label("L_k1_end")
    p.other("s_endpgm")
    return p


def gen_k2():
    p = Prog()
    S = p.salu
    V = p.valu
    S("s_cmp_ge_u32 s2, 192", ["s2"], ["scc"])
    S("s_cbranch_scc1 L_k2_end", ["scc"])
    p.other("s_load_dwordx2 s[10:11], s[0:1], 80")
    p.other("s_load_dwordx2 s[16:17], s[0:1], 96")
    V("v_lshrrev_b32 v254, 6, v0", ["v0"], ["v254"])
    V("v_and_b32 v255, 63, v0", ["v0"], ["v255"])
    V("v_readfirstlane_b32 s44, v254", ["v254"], ["s44"])
    S("s_mul_i32 s3, s2, 43691", ["s2"], ["s3"])
    S("s_lshr_b32 s47, s3, 18", ["s3"], ["s47"])
    S("s_mul_i32 s3, s47, 6", ["s47"], ["s3"])
    S("s_sub_u32 s46, s2, s3", ["s2", "s3"], ["s46"])
    S("s_and_b32 s48, s47, 15", ["s47"], ["s48"])
    S("s_lshr_b32 s49, s47, 4", ["s47"], ["s49"])
    p.other("s_waitcnt lgkmcnt(0)")
    S("s_mul_i32 s3, s47, 786432", ["s47"], ["s3"])
    S("s_add_u32 s36, s16, s3", ["s16", "s3"], ["s36"])
    S("s_addc_u32 s37, s17, 0", ["s17"], ["s37"])
    S("s_mov_b32 s38, 786432", [], ["s38"])
    S("s_mov_b32 s39, 0x20000", [], ["s39"])
    S("s_mov_b32 s28, s10", ["s10"], ["s28"])
    S("s_mov_b32 s29, s11", ["s11"], ["s29"])
    S("s_mov_b32 s30, 3145728", [], ["s30"])
    S("s_mov_b32 s31, 0x20000", [], ["s31"])
    S("s_mul_i32 s50, s44, 24576", ["s44"], ["s50"])
    S("s_lshl_b32 s3, s46, 12", ["s46"], ["s3"])
    S("s_add_u32 s50, s50, s3", ["s50", "s3"], ["s50"])
    V("v_lshlrev_b32 v250, 4, v255", ["v255"], ["v250"])
    V("v_add_u32 v250, s50, v250", ["s50", "v250"], ["v250"])
    for hg in range(1, 8):
        S(f"s_mov_b32 s{51 + hg}, {hg * 98304}", [], [f"s{51 + hg}"])
    for hg in range(8):
        for r in range(4):
            d = (hg * 4 + r) * 4
            so = "0" if hg == 0 else f"s{51 + hg}"
            p.vload(f"buffer_load_dwordx4 {rng('v', d, 4)}, v250, s[36:39], {so} offen offset:{r * 1024}",
                    ["v250"] + R("s", 36, 4) + ([so] if hg else []), R("v", d, 4))
    S("s_mul_i32 s3, s48, 96", ["s48"], ["s3"])
    S("s_lshl_b32 s50, s46, 4", ["s46"], ["s50"])
    S("s_add_u32 s3, s3, s50", ["s3", "s50"], ["s3"])
    S("s_lshl_b32 s3, s3, 11", ["s3"], ["s3"])
    S("s_lshl_b32 s50, s49, 10", ["s49"], ["s50"])
    S("s_add_u32 s3, s3, s50", ["s3", "s50"], ["s3"])
    S("s_lshl_b32 s50, s44, 8", ["s44"], ["s50"])
    S("s_add_u32 s3, s3, s50", ["s3", "s50"], ["s3"])
    V("v_and_b32 v251, 15, v255", ["v255"], ["v251"])
    V("v_lshrrev_b32 v252, 4, v255", ["v255"], ["v252"])
    V("v_lshlrev_b32 v252, 6, v252", ["v252"], ["v252"])
    V("v_lshl_add_u32 v251, v251, 11, v252", ["v251", "v252"], ["v251"])
    V("v_add_u32 v251, s3, v251", ["s3", "v251"], ["v251"])
    S("s_mov_b32 s60, 0xffff0000", [], ["s60"])
    ACC = 128
    for hg in range(8):
        for r in range(4):
            for jj in range(4):
                s_ = (hg * 4 + r) * 4 + jj
                lo = ACC + (r * 4 + jj) * 2
                if hg == 0:
                    V(f"v_lshlrev_b32 v{lo}, 16, v{s_}", [f"v{s_}"], [f"v{lo}"])
                    V(f"v_and_b32 v{lo + 1}, s60, v{s_}", ["s60", f"v{s_}"], [f"v{lo + 1}"])
                else:
                    V(f"v_lshlrev_b32 v248, 16, v{s_}", [f"v{s_}"], ["v248"])
                    V(f"v_and_b32 v249, s60, v{s_}", ["s60", f"v{s_}"], ["v249"])
                    V(f"v_add_f32 v{lo}, v{lo}, v248", [f"v{lo}", "v248"], [f"v{lo}"])
                    V(f"v_add_f32 v{lo + 1}, v{lo + 1}, v249", [f"v{lo + 1}", "v249"], [f"v{lo + 1}"])
    for r in range(4):
        for jj in range(4):
            lo = ACC + (r * 4 + jj) * 2
            V(f"v_cvt_pk_bf16_f32 v{160 + r * 4 + jj}, v{lo}, v{lo + 1}", [f"v{lo}", f"v{lo + 1}"], [f"v{160 + r * 4 + jj}"])
        p.vstore(f"buffer_store_dwordx4 {rng('v', 160 + 4 * r, 4)}, v251, s[28:31], 0 offen offset:{r * 16}",
                 R("v", 160 + 4 * r, 4) + ["v251"] + R("s", 28, 4))
    p.label("L_k2_end")
    p.other("s_endpgm")
    return p


HEADER = """; Two-kernel implementation (generated by a hand-written python generator).
; @launch kernel=k1_kernel grid=(256,1,1) block=(256,1,1) lds=163840
; @launch kernel=k2_kernel grid=(192,1,1) block=(256,1,1) lds=0
.amdgcn_target "amdgcn-amd-amdhsa--gfx950"
.text
"""


def kd(name, nvgpr, accum):
    return f""".amdhsa_kernel {name}
  .amdhsa_next_free_vgpr {nvgpr}
  .amdhsa_next_free_sgpr 96
  .amdhsa_accum_offset {accum}
  .amdhsa_group_segment_fixed_size 0
  .amdhsa_kernarg_size 104
  .amdhsa_user_sgpr_count 2
  .amdhsa_user_sgpr_kernarg_segment_ptr 1
  .amdhsa_system_sgpr_workgroup_id_x 1
.end_amdhsa_kernel
"""


def main():
    t1, i1 = finalize(gen_k1())
    t2, i2 = finalize(gen_k2())
    s = HEADER
    for name, t in (("k1_kernel", t1), ("k2_kernel", t2)):
        s += f".globl {name}\n.p2align 8\n.type {name},@function\n{name}:\n{t}"
    s += '.section .rodata,"a"\n.p2align 6\n'
    s += kd("k1_kernel", 512, 256)
    s += ".p2align 6\n"
    s += kd("k2_kernel", 256, 256)
    open(OUT, "w").write(s)
    print("k1 instrs", len(i1), "k2 instrs", len(i2))


if __name__ == "__main__":
    main()
```

```python
import math
import struct
import sys

sys.path.insert(0, "work")
from asmgen import *

NAME = "concat_heads__gqa_block_cached__gqa_block_cached__near_ridge"
OUT = f"cdna_kernels/{NAME}.s"
PROF = len(sys.argv) > 1 and sys.argv[1] == "prof"
FLAGS = set(sys.argv[2:])
if PROF:
    OUT = "prof%s.s" % "".join(sys.argv[2:])
if len(sys.argv) > 1 and sys.argv[1] == "var":
    OUT = "var%s.s" % "".join(sys.argv[2:])


KVN = 3
for f_ in FLAGS:
    if f_.startswith("kv"):
        KVN = int(f_[2:])


NTKV = "" if "nokvnt" in FLAGS else " nt"
NTX = " nt" if "ntx" in FLAGS else ""
NTW = " nt" if "ntw" in FLAGS else ""
NTS = " nt" if "nts" in FLAGS else ""
NTP = " nt" if "ntp" in FLAGS else ""


def f32bits(x):
    return struct.unpack("<I", struct.pack("<f", x))[0]


def stamp(p, idx):
    if PROF:
        p.other(f"s_memtime s[{80 + 2 * idx}:{81 + 2 * idx}]")
        p.other("s_waitcnt lgkmcnt(0)")


def dump_stamps(p, n, wgs=(0, 9, 100, 255)):
    if not PROF:
        return
    p.other("s_load_dwordx2 s[76:77], s[0:1], 88")
    p.other("s_waitcnt lgkmcnt(0)")
    p.salu("s_mov_b32 s78, 256", [], ["s78"])
    p.salu("s_mov_b32 s79, 0x20000", [], ["s79"])
    p.salu("s_cmp_lg_u32 s44, 0", ["s44"], ["scc"])
    lab = f"L_nost_{id(p)}"
    p.salu(f"s_cbranch_scc1 {lab}", ["scc"])
    for k, wg in enumerate(wgs):
        l2 = f"L_st_{id(p)}_{k}"
        p.salu(f"s_cmp_lg_u32 s2, {wg}", ["s2"], ["scc"])
        p.salu(f"s_cbranch_scc1 {l2}", ["scc"])
        for i in range(n):
            p.salu(f"s_sub_u32 s3, s{80 + 2 * i}, s80", [f"s{80 + 2 * i}", "s80"], ["s3"])
            p.valu("v_mov_b32 v250, s3", ["s3"], ["v250"])
            p.valu(f"v_mov_b32 v251, {(k * 8 + i) * 4}", [], ["v251"])
            p.vstore("buffer_store_dword v250, v251, s[76:79], 0 offen", ["v250", "v251"] + R("s", 76, 4))
            p.waitall()
        p.label(l2)
    p.label(lab)


class G:
    def __init__(self):
        self.p = Prog()

    def take(self):
        r = self.p.ins
        self.p.ins = []
        return r


def gated_merge(main, fill, ratio):
    out = []
    mi = fi = 0
    while mi < len(main) or fi < len(fill):
        progressed = False
        if mi < len(main) and main[mi][1] < fi:
            out.extend(main[mi][0])
            mi += 1
            progressed = True
            k = 0
            while k < ratio and fi < len(fill) and fill[fi][1] < mi:
                out.extend(fill[fi][0])
                fi += 1
                k += 1
        else:
            if fi < len(fill) and fill[fi][1] < mi:
                out.extend(fill[fi][0])
                fi += 1
                progressed = True
        assert progressed, (mi, fi)
    return out


def spread(mf, fl):
    out = []
    n, m = len(mf), len(fl)
    k = 0
    for i, x in enumerate(mf):
        out.extend(x)
        tgt = ((i + 1) * m + n - 1) // n
        while k < min(tgt, m):
            out.extend(fl[k])
            k += 1
    return out


def gen_k1():
    p = Prog()
    S = p.salu
    V = p.valu
    g = G()
    q = g.p
    S("s_cmp_ge_u32 s2, 256", ["s2"], ["scc"])
    S("s_cbranch_scc1 L_k1_end", ["scc"])
    if "map0" in FLAGS:
        S("s_and_b32 s46, s2, 7", ["s2"], ["s46"])
        S("s_lshr_b32 s47, s2, 3", ["s2"], ["s47"])
        S("s_and_b32 s48, s47, 15", ["s47"], ["s48"])
        S("s_lshr_b32 s49, s47, 4", ["s47"], ["s49"])
    else:
        S("s_and_b32 s46, s2, 3", ["s2"], ["s46"])
        S("s_lshl_b32 s46, s46, 1", ["s46"], ["s46"])
        S("s_lshr_b32 s3, s2, 7", ["s2"], ["s3"])
        S("s_add_u32 s46, s46, s3", ["s46", "s3"], ["s46"])
        S("s_bfe_u32 s48, s2, 0x40003", ["s2"], ["s48"])
        S("s_bfe_u32 s49, s2, 0x10002", ["s2"], ["s49"])
        S("s_lshl_b32 s47, s49, 4", ["s49"], ["s47"])
        S("s_add_u32 s47, s47, s48", ["s47", "s48"], ["s47"])
    S("s_mul_i32 s3, s49, 40", ["s49"], ["s3"])
    S("s_add_u32 s4, s0, s3", ["s0", "s3"], ["s4"])
    S("s_addc_u32 s5, s1, 0", ["s1"], ["s5"])
    p.other("s_load_dwordx8 s[8:15], s[4:5], 0")
    p.other("s_load_dwordx2 s[18:19], s[4:5], 32")
    p.other("s_load_dwordx2 s[16:17], s[0:1], 96")
    V("v_lshrrev_b32 v254, 6, v0", ["v0"], ["v254"])
    V("v_and_b32 v255, 63, v0", ["v0"], ["v255"])
    V("v_readfirstlane_b32 s44, v254", ["v254"], ["s44"])
    S("s_lshl_b32 s45, s46, 2", ["s46"], ["s45"])
    S("s_add_u32 s45, s45, s44", ["s45", "s44"], ["s45"])
    for s_ in range(1, 8):
        S(f"s_mov_b32 s{50 + s_}, {s_ * 8192}", [], [f"s{50 + s_}"])
    for kt in range(1, 6):
        S(f"s_mov_b32 s{58 + kt}, {kt * 4096}", [], [f"s{58 + kt}"])
    cexp = (128.0 ** -0.5) * math.log2(math.e)
    S(f"s_mov_b32 s64, {f32bits(cexp):#x}", [], ["s64"])
    S("s_mov_b32 s65, 0x05040100", [], ["s65"])
    S("s_mov_b32 s66, 0x07060302", [], ["s66"])
    S("s_lshl_b32 s67, s44, 11", ["s44"], ["s67"])

    def sR(s_):
        return "0" if s_ == 0 else f"s{50 + s_}"

    def sK(kt):
        return "0" if kt == 0 else f"s{58 + kt}"

    L = "v255"
    V(f"v_lshrrev_b32 v248, 4, {L}", [L], ["v248"])
    V(f"v_and_b32 v249, 15, {L}", [L], ["v249"])
    V("v_and_b32 v250, 3, v249", ["v249"], ["v250"])
    V("v_lshrrev_b32 v251, 2, v249", ["v249"], ["v251"])
    V("v_lshl_add_u32 v250, v250, 2, v251", ["v250", "v251"], ["v250"])
    V("v_lshlrev_b32 v250, 4, v250", ["v250"], ["v250"])
    vW, vK, vV = "v224", "v225", "v226"
    vXd = ["v227", "v228"]
    vXr = [["v229", "v230"], ["v231", "v232"]]
    vWo, vOw, vOr, vSt = "v252", "v253", "v254", "v253"
    V(f"v_lshl_add_u32 {vW}, v248, 16, v250", ["v248", "v250"], [vW])
    V(f"v_lshl_add_u32 {vV}, v248, 10, v250", ["v248", "v250"], [vV])
    V("v_lshlrev_b32 v251, 4, v248", ["v248"], ["v251"])
    V(f"v_lshl_add_u32 {vK}, v249, 8, v251", ["v249", "v251"], [vK])
    S("s_lshl_b32 s3, s44, 1", ["s44"], ["s3"])
    for c in range(2):
        S(f"s_add_u32 s70, s3, {c}", ["s3"], ["s70"])
        V(f"v_xor_b32 v251, s70, {L}", ["s70", L], ["v251"])
        V("v_lshlrev_b32 v251, 4, v251", ["v251"], ["v251"])
        V(f"v_add_u32 {vXd[c]}, s67, v251", ["s67", "v251"], [vXd[c]])
    p.other("s_waitcnt lgkmcnt(0)")
    S("s_mul_i32 s3, s48, 98304", ["s48"], ["s3"])
    S("s_add_u32 s20, s8, s3", ["s8", "s3"], ["s20"])
    S("s_addc_u32 s21, s9, 0", ["s9"], ["s21"])
    S("s_mov_b32 s22, 98304", [], ["s22"])
    S("s_mov_b32 s23, 0x20000", [], ["s23"])
    S("s_lshl_b32 s3, s45, 8", ["s45"], ["s3"])
    S("s_add_u32 s24, s14, s3", ["s14", "s3"], ["s24"])
    S("s_addc_u32 s25, s15, 0", ["s15"], ["s25"])
    S("s_mov_b32 s26, 262144", [], ["s26"])
    S("s_mov_b32 s27, 0x20000", [], ["s27"])

    RING = [0, 32, 64, 96]
    BF = 128
    T = 176
    KV = 192

    def w_loads(dst, first):
        out = []
        if not first:
            q.salu("s_add_u32 s24, s24, 262144", ["s24"], ["s24"])
            q.salu("s_addc_u32 s25, s25, 0", ["s25"], ["s25"])
        for s_ in range(8):
            so = sR(s_)
            q.vload(f"buffer_load_dwordx4 {rng('v', dst + 4 * s_, 4)}, {vW}, s[24:27], {so} offen{NTW}",
                    [vW] + R("s", 24, 4) + ([so] if s_ else []), R("v", dst + 4 * s_, 4))
            out.append(g.take())
        return out

    def kfrag(kt, r):
        n = kt * 4 + r
        return ("a", 192 + 4 * n) if n < 16 else ("v", KV + 4 * (n - 16))

    stamp(p, 0)
    S("s_lshl_b32 s68, s44, 14", ["s44"], ["s68"])
    S("s_add_u32 s68, s68, 98304", ["s68"], ["s68"])
    S("s_lshl_b32 s69, s48, 5", ["s48"], ["s69"])
    S("s_lshl_b32 s3, s44, 3", ["s44"], ["s3"])
    S("s_add_u32 s69, s69, s3", ["s69", "s3"], ["s69"])
    S("s_lshl_b32 s3, s69, 13", ["s69"], ["s3"])
    S("s_lshl_b32 s70, s46, 10", ["s46"], ["s70"])
    S("s_add_u32 s3, s3, s70", ["s3", "s70"], ["s3"])
    S("s_add_u32 s72, s14, s3", ["s14", "s3"], ["s72"])
    S("s_addc_u32 s73, s15, 0", ["s15"], ["s73"])
    S("s_mov_b32 s74, 65536", [], ["s74"])
    S("s_mov_b32 s75, 0x20000", [], ["s75"])
    S("s_mov_b32 m0, s68", ["s68"], ["m0"])

    V(f"v_lshlrev_b32 {vOr}, 4, {L}", [L], [vOr])
    if "notouch" not in FLAGS:
        for r in range(8):
            so = sR(r)
            p.dma(f"buffer_load_dwordx4 {vOr}, s[72:75], {so} offen lds", [vOr] + R("s", 72, 4) + ([so] if r else []))
    for it in w_loads(RING[0], True):
        p.ins.extend(it)
    if "st1" in FLAGS:
        stamp(p, 1)
    for m in range(12):
        for c in range(2):
            off = (8 * m + c) * 1024
            S(f"s_add_u32 m0, s67, {off}", ["s67"], ["m0"])
            S(f"s_mov_b32 s70, {off}", [], ["s70"])
            p.dma(f"buffer_load_dwordx4 {vXd[c]}, s[20:23], s70 offen{NTX} lds", [vXd[c], "s70"] + R("s", 20, 4), tag="x")
    if "st1" in FLAGS:
        stamp(p, 2)
    if "oldstart" in FLAGS:
        for st in range(1, 4):
            for it in w_loads(RING[st], False):
                p.ins.extend(it)
            if "st1" in FLAGS:
                stamp(p, 2 + st)
    S("s_lshl_b32 s3, s48, 5", ["s48"], ["s3"])
    S("s_add_u32 s3, s3, s45", ["s3", "s45"], ["s3"])
    S("s_mul_i32 s3, s3, 24576", ["s3"], ["s3"])
    S("s_add_u32 s28, s10, s3", ["s10", "s3"], ["s28"])
    S("s_addc_u32 s29, s11, 0", ["s11"], ["s29"])
    S("s_mov_b32 s30, 24576", [], ["s30"])
    S("s_mov_b32 s31, 0x20000", [], ["s31"])
    S("s_add_u32 s32, s12, s3", ["s12", "s3"], ["s32"])
    S("s_addc_u32 s33, s13, 0", ["s13"], ["s33"])
    S("s_mov_b32 s34, 24576", [], ["s34"])
    S("s_mov_b32 s35, 0x20000", [], ["s35"])
    S("s_lshl_b32 s3, s47, 3", ["s47"], ["s3"])
    S("s_add_u32 s3, s3, s46", ["s3", "s46"], ["s3"])
    S("s_mul_i32 s3, s3, 98304", ["s3"], ["s3"])
    S("s_add_u32 s36, s16, s3", ["s16", "s3"], ["s36"])
    S("s_addc_u32 s37, s17, 0", ["s17"], ["s37"])
    S("s_mov_b32 s38, 98304", [], ["s38"])
    S("s_mov_b32 s39, 0x20000", [], ["s39"])
    S("s_lshl_b32 s3, s46, 19", ["s46"], ["s3"])
    S("s_add_u32 s40, s18, s3", ["s18", "s3"], ["s40"])
    S("s_addc_u32 s41, s19, 0", ["s19"], ["s41"])
    S("s_mov_b32 s42, 32768", [], ["s42"])
    S("s_mov_b32 s43, 0x20000", [], ["s43"])
    V("v_and_b32 v250, 7, v249", ["v249"], ["v250"])
    V("v_lshlrev_b32 v251, 10, v249", ["v249"], ["v251"])
    for par in range(2):
        V(f"v_add_u32 v246, {4 * par}, v248", ["v248"], ["v246"])
        V("v_xor_b32 v246, v246, v250", ["v246", "v250"], ["v246"])
        V(f"v_lshl_add_u32 {vXr[par][0]}, v246, 4, v251", ["v246", "v251"], [vXr[par][0]])
        V(f"v_add_u32 {vXr[par][1]}, 49152, {vXr[par][0]}", [vXr[par][0]], [vXr[par][1]])
    S("s_mul_i32 s3, s44, 24576", ["s44"], ["s3"])
    V(f"v_lshlrev_b32 {vOr}, 4, {L}", [L], [vOr])
    V(f"v_add_u32 {vOw}, s3, {vOr}", ["s3", vOr], [vOw])
    S("s_lshl_b32 s3, s44, 8", ["s44"], ["s3"])
    V("v_lshlrev_b32 v251, 4, v249", ["v249"], ["v251"])
    V(f"v_lshl_add_u32 {vWo}, v248, 13, v251", ["v248", "v251"], [vWo])
    V(f"v_add_u32 {vWo}, s3, {vWo}", ["s3", vWo], [vWo])

    def acc(j, qt):
        return ("a", (qt * 8 + j) * 4)

    def perms(raw, m, tdst):
        out = []
        for hi in range(2):
            for pp in range(4):
                a = raw + 4 * (2 * pp) + m
                b = raw + 4 * (2 * pp + 1) + m
                d = tdst + 4 * hi + pp
                sel = "s66" if hi else "s65"
                q.valu(f"v_perm_b32 v{d}, v{b}, v{a}, {sel}", [f"v{a}", f"v{b}", sel], [f"v{d}"])
                out.append(g.take())
        return out

    def x_reads(step, bf):
        out = []
        for qt in range(6):
            ar = vXr[step & 1][qt // 3]
            d = bf + 4 * qt
            q.dsr(f"ds_read_b128 {rng('v', d, 4)}, {ar} offset:{(step >> 1) * 128 + (qt % 3) * 16384}",
                  [ar], R("v", d, 4))
            out.append(g.take())
        return out

    def gemm(ring, bfb, tb, b_reads, next_loads, pre_done=False, stamps=None, extra=None):
        if not pre_done:
            for it in b_reads(0, bfb):
                p.ins.extend(it)
        for it in perms(ring[0], 0, tb):
            p.ins.extend(it)
        for s_ in range(16):
            bf = bfb + 24 * (s_ & 1)
            for m in range(4):
                tcur = tb + 8 * (m & 1)
                tnext = tb + 8 * ((m + 1) & 1)
                mf = []
                for qt in range(6):
                    for jj in range(2):
                        q.mfma16(acc(2 * m + jj, qt), ("v", tcur + 4 * jj), ("v", bf + 4 * qt),
                                 None if s_ == 0 else acc(2 * m + jj, qt))
                        mf.append(g.take())
                fl = []
                if m < 3:
                    fl += perms(ring[s_ % 4], m + 1, tnext)
                elif s_ + 1 < 16:
                    fl += perms(ring[(s_ + 1) % 4], 0, tnext)
                if m == 0 and s_ + 1 < 16:
                    fl += b_reads(s_ + 1, bfb + 24 * ((s_ + 1) & 1))
                if m == 3:
                    fl = next_loads(s_) + fl
                if extra:
                    fl = extra(s_, m) + fl
                p.ins.extend(spread(mf, fl))
            if stamps and s_ in stamps:
                stamp(p, stamps[s_])

    def v_loads(u, dst):
        out = []
        for s_ in range(8):
            so = sK(2 * u + (s_ >> 2))
            q.vload(f"buffer_load_dwordx4 {rng('v', dst + 4 * s_, 4)}, {vV}, s[32:35], {so} offen offset:{(s_ & 3) * 256}{NTKV}",
                    [vV] + R("s", 32, 4) + ([so] if so != "0" else []), R("v", dst + 4 * s_, 4))
            out.append(g.take())
        return out

    def k_loads(ns):
        out = []
        for n in ns:
            kt, r = n >> 2, n & 3
            pf, b0 = kfrag(kt, r)
            so = sK(kt)
            q.vload(f"buffer_load_dwordx4 {rng(pf, b0, 4)}, {vK}, s[28:31], {so} offen offset:{r * 64}{NTKV}",
                    [vK] + R("s", 28, 4) + ([so] if kt else []), R(pf, b0, 4))
            out.append(g.take())
        return out

    def v_dma(ns):
        out = []
        for n in ns:
            u, s_ = n >> 3, n & 7
            so = sK(2 * u + (s_ >> 2))
            q.salu(f"s_add_u32 m0, s68, {n * 1024 - (s_ & 3) * 256}", ["s68"], ["m0"])
            q.dma(f"buffer_load_dwordx4 {vV}, s[32:35], {so} offen offset:{(s_ & 3) * 256}{NTKV} lds",
                  [vV] + R("s", 32, 4) + ([so] if so != "0" else []), tag="vd")
            out.append(g.take())
        return out

    def next_a(s_):
        out = []
        if s_ + 4 < 16 and "nold" not in FLAGS:
            out += w_loads(RING[s_ % 4], False)
        for n in range(KVN * s_, min(KVN * s_ + KVN, 40)):
            out += k_loads([n]) if n < 24 else v_dma([n - 24])
        if s_ == 14:
            out += v_loads(2, RING[2])
        return out

    def touch_q():
        out = []
        q.salu("s_lshl_b32 s3, s69, 10", ["s69"], ["s3"])
        q.salu("s_add_u32 s72, s40, s3", ["s40", "s3"], ["s72"])
        q.salu("s_addc_u32 s73, s41, 0", ["s41"], ["s73"])
        out.append(g.take())
        return out

    if "oldstart" in FLAGS:
        for it in touch_q():
            p.ins.extend(it)

    def extra_a(s_, m):
        if "oldstart" in FLAGS:
            return []
        if s_ == 0 and m < 3:
            return w_loads(RING[m + 1], False)
        if s_ == 1 and m == 1:
            return touch_q()
        return []
    if "st1" in FLAGS:
        stamp(p, 6)
        p.barrier(needs=["x"])
        stamp(p, 7)
        gemm(RING, BF, T, x_reads, next_a, extra=extra_a)
    elif "st0" in FLAGS:
        stamp(p, 1)
        p.valu("v_mov_b32 v246, v0", ["v0"], ["v246"])
        stamp(p, 2)
        p.other("s_nop 0", needs=["x"])
        stamp(p, 3)
        p.barrier(needs=["x"])
        stamp(p, 4)
        gemm(RING, BF, T, x_reads, next_a, stamps={0: 5, 1: 6, 2: 7}, extra=extra_a)
    else:
        p.barrier(needs=["x"])
        stamp(p, 1)
        gemm(RING, BF, T, x_reads, next_a, stamps={3: 2, 9: 3}, extra=extra_a)
        stamp(p, 4)
    p.barrier()

    QF = 176
    SACC = [128, 152]
    PB = 224
    STG = 236
    TMP = 244
    VT = [RING[3], RING[0], RING[1]]
    main = []
    fill = []

    def one(gate):
        for i in g.take():
            fill.append(([i], gate))

    def conv(qt, r, dst, gate):
        for jj in range(4):
            t0, t1 = TMP + 2 * (jj & 1), TMP + 2 * (jj & 1) + 1
            a0 = acc(2 * jj, qt)[1] + r
            a1 = acc(2 * jj + 1, qt)[1] + r
            q.valu(f"v_accvgpr_read_b32 v{t0}, a{a0}", [f"a{a0}"], [f"v{t0}"])
            q.valu(f"v_accvgpr_read_b32 v{t1}, a{a1}", [f"a{a1}"], [f"v{t1}"])
            q.valu(f"v_cvt_pk_bf16_f32 v{dst + jj}, v{t0}, v{t1}", [f"v{t0}", f"v{t1}"], [f"v{dst + jj}"])
        one(gate)

    order = ["S0", "S1", "S2", "P0", "S3", "P1", "S4", "P2", "S5", "P3", "P4", "P5"]
    mstart = {nm: 24 * k for k, nm in enumerate(order)}

    def s_part_end(qt, r):
        return mstart[f"S{qt}"] + 6 * r + 5

    def m_end(nm):
        return mstart[nm] + 23

    fidx = {}

    def C(qt):
        for r in range(4):
            gate = -1 if qt == 0 else s_part_end(qt - 1, r)
            conv(qt, r, QF + 4 * r, gate)
            fidx[("C", qt, r)] = len(fill) - 1

    def M(qt):
        b = SACC[qt & 1]
        v = [f"v{b + i}" for i in range(24)]
        gate = min(m_end(f"S{qt}") + 2, 24 * 12 - 1)
        q.valu(f"v_max3_f32 v248, {v[0]}, {v[1]}, {v[2]}", v[0:3], ["v248"])
        i = 3
        while i < 24:
            j = min(i + 1, 23)
            q.valu(f"v_max3_f32 v248, v248, {v[i]}, {v[j]}", ["v248", v[i], v[j]], ["v248"])
            i += 2
        q.valu("v_mov_b32 v249, v248", ["v248"], ["v249"])
        q.perm("v_permlane32_swap_b32 v248, v249", ["v248", "v249"], ["v248", "v249"])
        q.valu("v_max_f32 v248, v248, v249", ["v248", "v249"], ["v248"])
        q.valu("v_mov_b32 v249, v248", ["v248"], ["v249"])
        q.perm("v_permlane16_swap_b32 v248, v249", ["v248", "v249"], ["v248", "v249"])
        q.valu("v_max_f32 v248, v248, v249", ["v248", "v249"], ["v248"])
        q.valu("v_mul_f32 v248, s64, v248", ["s64", "v248"], ["v248"])
        for i in range(24):
            q.valu(f"v_fma_f32 {v[i]}, {v[i]}, s64, -v248", [v[i], "s64", "v248"], [v[i]])
            q.trans(f"v_exp_f32 {v[i]}, {v[i]}", [v[i]], [v[i]])
        q.valu(f"v_add_f32 v250, {v[0]}, {v[1]}", [v[0], v[1]], ["v250"])
        q.valu(f"v_add_f32 v251, {v[2]}, {v[3]}", [v[2], v[3]], ["v251"])
        for i in range(4, 24):
            t = "v250" if i & 1 else "v251"
            q.valu(f"v_add_f32 {t}, {t}, {v[i]}", [t, v[i]], [t])
        q.valu("v_add_f32 v250, v250, v251", ["v250", "v251"], ["v250"])
        q.valu("v_mov_b32 v251, v250", ["v250"], ["v251"])
        q.perm("v_permlane32_swap_b32 v250, v251", ["v250", "v251"], ["v250", "v251"])
        q.valu("v_add_f32 v250, v250, v251", ["v250", "v251"], ["v250"])
        q.valu("v_mov_b32 v251, v250", ["v250"], ["v251"])
        q.perm("v_permlane16_swap_b32 v250, v251", ["v250", "v251"], ["v250", "v251"])
        q.valu("v_add_f32 v250, v250, v251", ["v250", "v251"], ["v250"])
        q.trans("v_rcp_f32 v250, v250", ["v250"], ["v250"])
        for i in range(24):
            q.valu(f"v_mul_f32 {v[i]}, {v[i]}, v250", [v[i], "v250"], [v[i]])
        one(gate)
        gate2 = gate if qt == 0 else max(gate, m_end(f"P{qt - 1}"))
        for pp in range(12):
            q.valu(f"v_cvt_pk_bf16_f32 v{PB + pp}, {v[2 * pp]}, {v[2 * pp + 1]}", [v[2 * pp], v[2 * pp + 1]], [f"v{PB + pp}"])
        one(gate2)
        fidx[("M", qt)] = len(fill) - 1

    def VP():
        q.valu(f"v_add_u32 v248, s68, {vOr}", ["s68", vOr], ["v248"])
        for n in range(16):
            d = RING[n >> 3] + 4 * (n & 7)
            q.dsr(f"ds_read_b128 {rng('v', d, 4)}, v248 offset:{n * 1024}", ["v248"], R("v", d, 4), needs=["vd"], tag="vr")
        one(-1)
        if "notouch" not in FLAGS:
            q.salu("s_mov_b32 m0, s68", ["s68"], ["m0"])
            for r in range(8):
                so = "s59" if r >= 4 else "0"
                q.dma(f"buffer_load_dwordx4 {vOr}, s[72:75], {so} offen offset:{(r & 3) * 1024} lds",
                      [vOr] + R("s", 72, 4) + ([so] if r >= 4 else []), needs=["vr"])
            one(-1)
        for u in range(3):
            for m in range(4):
                for it in perms(RING[u], m, VT[u] + 8 * m):
                    fill.append((it, -1))
        fidx["VP"] = len(fill) - 1

    def OC(qt):
        gate = min(m_end(f"P{qt}") + 2, 24 * 12 - 1)
        for r in range(4):
            d = STG + 4 * (r & 1)
            conv(qt, r, d, gate)
            q.dsw(f"ds_write_b128 {vOw}, {rng('v', d, 4)} offset:{(r * 6 + qt) * 1024}", [vOw] + R("v", d, 4), tag="o")
            one(gate)

    RINGC = [RING[2], KV, 128, RING[3]]
    BFC = 0
    TC = 48

    def wo_loads(dst, first):
        out = []
        if not first:
            q.salu("s_add_u32 s40, s40, 32768", ["s40"], ["s40"])
            q.salu("s_addc_u32 s41, s41, 0", ["s41"], ["s41"])
        for s_ in range(8):
            so = "s59" if s_ >= 4 else "0"
            q.vload(f"buffer_load_dwordx4 {rng('v', dst + 4 * s_, 4)}, {vWo}, s[40:43], {so} offen offset:{(s_ & 3) * 1024}{NTW}",
                    [vWo] + R("s", 40, 4) + ([so] if s_ >= 4 else []), R("v", dst + 4 * s_, 4))
            out.append(g.take())
        return out

    def WO(k, gate):
        for it in wo_loads(RINGC[k], k == 0):
            fill.append((it, gate))

    C(0); C(1); M(0); C(2); VP(); WO(0, -1); M(1); C(3); OC(0); M(2); C(4); OC(1); M(3); C(5)
    WO(1, m_end("S5")); OC(2); M(4); OC(3); M(5); WO(2, -1); OC(4); WO(3, m_end("P5")); OC(5)

    for nm in order:
        qt = int(nm[1])
        if nm[0] == "S":
            for r in range(4):
                gate = fidx[("C", qt, r)]
                if qt >= 2:
                    gate = max(gate, fidx[("M", qt - 2)])
                for kt in range(6):
                    d = ("v", SACC[qt & 1] + 4 * kt)
                    q.mfma16(d, kfrag(kt, r), ("v", QF + 4 * r), None if r == 0 else d)
                    main.append((g.take(), gate))
        else:
            gate = max(fidx[("M", qt)], fidx["VP"])
            for u in range(3):
                for j in range(8):
                    q.mfma16(acc(j, qt), ("v", VT[u] + 4 * j), ("v", PB + 4 * u), None if u == 0 else acc(j, qt))
                    main.append((g.take(), gate))
    p.ins.extend(gated_merge(main, fill, 5))
    if "st0" not in FLAGS:
        stamp(p, 5)
    p.barrier(needs=["o"])

    V(f"v_add_u32 v224, 49152, {vOr}", [vOr], ["v224"])

    def o_reads(step, bf):
        out = []
        for qt in range(6):
            n = step * 6 + qt
            ar = vOr if n < 48 else "v224"
            d = bf + 4 * qt
            q.dsr(f"ds_read_b128 {rng('v', d, 4)}, {ar} offset:{(n % 48) * 1024}", [ar], R("v", d, 4))
            out.append(g.take())
        return out

    def next_c(s_):
        if s_ + 4 < 16 and "nold" not in FLAGS:
            return wo_loads(RINGC[s_ % 4], False)
        return []

    gemm(RINGC, BFC, TC, o_reads, next_c)
    if "st0" not in FLAGS:
        stamp(p, 6)
    k = 0
    for qt in range(6):
        for r in range(4):
            d = 64 + 4 * (k % 16)
            k += 1
            for jj in range(4):
                t0 = 228 + 2 * jj
                a0 = acc(2 * jj, qt)[1] + r
                a1 = acc(2 * jj + 1, qt)[1] + r
                V(f"v_accvgpr_read_b32 v{t0}, a{a0}", [f"a{a0}"], [f"v{t0}"])
                V(f"v_accvgpr_read_b32 v{t0 + 1}, a{a1}", [f"a{a1}"], [f"v{t0 + 1}"])
                V(f"v_cvt_pk_bf16_f32 v{d + jj}, v{t0}, v{t0 + 1}", [f"v{t0}", f"v{t0 + 1}"], [f"v{d + jj}"])
            so = sK(qt)
            p.vstore(f"buffer_store_dwordx4 {rng('v', d, 4)}, {vSt}, s[36:39], {so} offen offset:{r * 1024}{NTS}",
                     R("v", d, 4) + [vSt] + R("s", 36, 4) + ([so] if qt else []))
    if PROF:
        p.waitall()
    if "st0" not in FLAGS:
        stamp(p, 7)
    dump_stamps(p, 8)
    p.label("L_k1_end")
    p.other("s_endpgm")
    return p


def gen_k2():
    p = Prog()
    S = p.salu
    V = p.valu
    S("s_cmp_ge_u32 s2, 192", ["s2"], ["scc"])
    S("s_cbranch_scc1 L_k2_end", ["scc"])
    p.other("s_load_dwordx2 s[10:11], s[0:1], 80")
    p.other("s_load_dwordx2 s[16:17], s[0:1], 96")
    V("v_lshrrev_b32 v254, 6, v0", ["v0"], ["v254"])
    V("v_and_b32 v255, 63, v0", ["v0"], ["v255"])
    V("v_readfirstlane_b32 s44, v254", ["v254"], ["s44"])
    S("s_mul_i32 s3, s2, 43691", ["s2"], ["s3"])
    S("s_lshr_b32 s47, s3, 18", ["s3"], ["s47"])
    S("s_mul_i32 s3, s47, 6", ["s47"], ["s3"])
    S("s_sub_u32 s46, s2, s3", ["s2", "s3"], ["s46"])
    S("s_and_b32 s48, s47, 15", ["s47"], ["s48"])
    S("s_lshr_b32 s49, s47, 4", ["s47"], ["s49"])
    p.other("s_waitcnt lgkmcnt(0)")
    S("s_mul_i32 s3, s47, 786432", ["s47"], ["s3"])
    S("s_add_u32 s36, s16, s3", ["s16", "s3"], ["s36"])
    S("s_addc_u32 s37, s17, 0", ["s17"], ["s37"])
    S("s_mov_b32 s38, 786432", [], ["s38"])
    S("s_mov_b32 s39, 0x20000", [], ["s39"])
    S("s_mov_b32 s28, s10", ["s10"], ["s28"])
    S("s_mov_b32 s29, s11", ["s11"], ["s29"])
    S("s_mov_b32 s30, 3145728", [], ["s30"])
    S("s_mov_b32 s31, 0x20000", [], ["s31"])
    S("s_mul_i32 s50, s44, 24576", ["s44"], ["s50"])
    S("s_lshl_b32 s3, s46, 12", ["s46"], ["s3"])
    S("s_add_u32 s50, s50, s3", ["s50", "s3"], ["s50"])
    V("v_lshlrev_b32 v250, 4, v255", ["v255"], ["v250"])
    V("v_add_u32 v250, s50, v250", ["s50", "v250"], ["v250"])
    for hg in range(1, 8):
        S(f"s_mov_b32 s{51 + hg}, {hg * 98304}", [], [f"s{51 + hg}"])
    for hg in range(8):
        for r in range(4):
            d = (hg * 4 + r) * 4
            so = "0" if hg == 0 else f"s{51 + hg}"
            p.vload(f"buffer_load_dwordx4 {rng('v', d, 4)}, v250, s[36:39], {so} offen offset:{r * 1024}{NTP}",
                    ["v250"] + R("s", 36, 4) + ([so] if hg else []), R("v", d, 4))
    S("s_mul_i32 s3, s48, 96", ["s48"], ["s3"])
    S("s_lshl_b32 s50, s46, 4", ["s46"], ["s50"])
    S("s_add_u32 s3, s3, s50", ["s3", "s50"], ["s3"])
    S("s_lshl_b32 s3, s3, 11", ["s3"], ["s3"])
    S("s_lshl_b32 s50, s49, 10", ["s49"], ["s50"])
    S("s_add_u32 s3, s3, s50", ["s3", "s50"], ["s3"])
    S("s_lshl_b32 s50, s44, 8", ["s44"], ["s50"])
    S("s_add_u32 s3, s3, s50", ["s3", "s50"], ["s3"])
    V("v_and_b32 v251, 15, v255", ["v255"], ["v251"])
    V("v_lshrrev_b32 v252, 4, v255", ["v255"], ["v252"])
    V("v_lshlrev_b32 v252, 6, v252", ["v252"], ["v252"])
    V("v_lshl_add_u32 v251, v251, 11, v252", ["v251", "v252"], ["v251"])
    V("v_add_u32 v251, s3, v251", ["s3", "v251"], ["v251"])
    S("s_mov_b32 s60, 0xffff0000", [], ["s60"])
    ACC = 128
    for hg in range(8):
        for r in range(4):
            for jj in range(4):
                s_ = (hg * 4 + r) * 4 + jj
                lo = ACC + (r * 4 + jj) * 2
                if hg == 0:
                    V(f"v_lshlrev_b32 v{lo}, 16, v{s_}", [f"v{s_}"], [f"v{lo}"])
                    V(f"v_and_b32 v{lo + 1}, s60, v{s_}", ["s60", f"v{s_}"], [f"v{lo + 1}"])
                else:
                    V(f"v_lshlrev_b32 v248, 16, v{s_}", [f"v{s_}"], ["v248"])
                    V(f"v_and_b32 v249, s60, v{s_}", ["s60", f"v{s_}"], ["v249"])
                    V(f"v_add_f32 v{lo}, v{lo}, v248", [f"v{lo}", "v248"], [f"v{lo}"])
                    V(f"v_add_f32 v{lo + 1}, v{lo + 1}, v249", [f"v{lo + 1}", "v249"], [f"v{lo + 1}"])
    for r in range(4):
        for jj in range(4):
            lo = ACC + (r * 4 + jj) * 2
            V(f"v_cvt_pk_bf16_f32 v{160 + r * 4 + jj}, v{lo}, v{lo + 1}", [f"v{lo}", f"v{lo + 1}"], [f"v{160 + r * 4 + jj}"])
        p.vstore(f"buffer_store_dwordx4 {rng('v', 160 + 4 * r, 4)}, v251, s[28:31], 0 offen offset:{r * 16}",
                 R("v", 160 + 4 * r, 4) + ["v251"] + R("s", 28, 4))
    p.label("L_k2_end")
    p.other("s_endpgm")
    return p


HEADER = """; Two-kernel implementation (generated by a hand-written python generator).
; @launch kernel=k1_kernel grid=(256,1,1) block=(256,1,1) lds=163840
; @launch kernel=k2_kernel grid=(192,1,1) block=(256,1,1) lds=0
.amdgcn_target "amdgcn-amd-amdhsa--gfx950"
.text
"""


def kd(name, nvgpr, accum):
    return f""".amdhsa_kernel {name}
  .amdhsa_next_free_vgpr {nvgpr}
  .amdhsa_next_free_sgpr 96
  .amdhsa_accum_offset {accum}
  .amdhsa_group_segment_fixed_size 0
  .amdhsa_kernarg_size 104
  .amdhsa_user_sgpr_count 2
  .amdhsa_user_sgpr_kernarg_segment_ptr 1
  .amdhsa_system_sgpr_workgroup_id_x 1
.end_amdhsa_kernel
"""


def main():
    t1, i1 = finalize(gen_k1())
    t2, i2 = finalize(gen_k2())
    s = HEADER
    for name, t in (("k1_kernel", t1), ("k2_kernel", t2)):
        s += f".globl {name}\n.p2align 8\n.type {name},@function\n{name}:\n{t}"
    s += '.section .rodata,"a"\n.p2align 6\n'
    s += kd("k1_kernel", 512, 256)
    s += ".p2align 6\n"
    s += kd("k2_kernel", 256, 256)
    open(OUT, "w").write(s)
    print("k1 instrs", len(i1), "k2 instrs", len(i2))


if __name__ == "__main__":
    main()
```

```python
import math
import struct
import sys

sys.path.insert(0, "work")
from asmgen import *

NAME = "concat_heads__gqa_block_cached__gqa_block_cached__near_ridge"
OUT = f"cdna_kernels/{NAME}.s"
PROF = len(sys.argv) > 1 and sys.argv[1] == "prof"
FLAGS = set(sys.argv[2:])
if PROF:
    OUT = "prof%s.s" % "".join(sys.argv[2:])
if len(sys.argv) > 1 and sys.argv[1] == "var":
    OUT = "var%s.s" % "".join(sys.argv[2:])


KVN = 3
for f_ in FLAGS:
    if f_.startswith("kv"):
        KVN = int(f_[2:])


NTKV = " nt" if "kvnt" in FLAGS else ""
NTX = " nt" if "ntx" in FLAGS else ""
NTW = " nt" if "ntw" in FLAGS else ""
NTS = " nt" if "nts" in FLAGS else ""
if "scs" in FLAGS:
    NTS = " sc1"
if "scs2" in FLAGS:
    NTS = " sc0 sc1"
NTP = " nt" if "ntp" in FLAGS else ""


def f32bits(x):
    return struct.unpack("<I", struct.pack("<f", x))[0]


def stamp(p, idx):
    if PROF:
        p.other(f"s_memtime s[{80 + 2 * idx}:{81 + 2 * idx}]")
        p.other("s_waitcnt lgkmcnt(0)")


def dump_stamps(p, n, wgs=(0, 9, 100, 255)):
    if not PROF:
        return
    p.other("s_load_dwordx2 s[76:77], s[0:1], 88")
    p.other("s_waitcnt lgkmcnt(0)")
    p.salu("s_mov_b32 s78, 256", [], ["s78"])
    p.salu("s_mov_b32 s79, 0x20000", [], ["s79"])
    p.salu("s_cmp_lg_u32 s44, 0", ["s44"], ["scc"])
    lab = f"L_nost_{id(p)}"
    p.salu(f"s_cbranch_scc1 {lab}", ["scc"])
    for k, wg in enumerate(wgs):
        l2 = f"L_st_{id(p)}_{k}"
        p.salu(f"s_cmp_lg_u32 s2, {wg}", ["s2"], ["scc"])
        p.salu(f"s_cbranch_scc1 {l2}", ["scc"])
        for i in range(n):
            p.salu(f"s_sub_u32 s3, s{80 + 2 * i}, s80", [f"s{80 + 2 * i}", "s80"], ["s3"])
            p.valu("v_mov_b32 v250, s3", ["s3"], ["v250"])
            p.valu(f"v_mov_b32 v251, {(k * 8 + i) * 4}", [], ["v251"])
            p.vstore("buffer_store_dword v250, v251, s[76:79], 0 offen", ["v250", "v251"] + R("s", 76, 4))
            p.waitall()
        p.label(l2)
    p.label(lab)


class G:
    def __init__(self):
        self.p = Prog()

    def take(self):
        r = self.p.ins
        self.p.ins = []
        return r


def gated_merge(main, fill, ratio):
    out = []
    mi = fi = 0
    while mi < len(main) or fi < len(fill):
        progressed = False
        if mi < len(main) and main[mi][1] < fi:
            out.extend(main[mi][0])
            mi += 1
            progressed = True
            k = 0
            while k < ratio and fi < len(fill) and fill[fi][1] < mi:
                out.extend(fill[fi][0])
                fi += 1
                k += 1
        else:
            if fi < len(fill) and fill[fi][1] < mi:
                out.extend(fill[fi][0])
                fi += 1
                progressed = True
        assert progressed, (mi, fi)
    return out


def spread(mf, fl):
    out = []
    n, m = len(mf), len(fl)
    k = 0
    for i, x in enumerate(mf):
        out.extend(x)
        tgt = ((i + 1) * m + n - 1) // n
        while k < min(tgt, m):
            out.extend(fl[k])
            k += 1
    return out


def gen_k1():
    p = Prog()
    S = p.salu
    V = p.valu
    g = G()
    q = g.p
    S("s_cmp_ge_u32 s2, 256", ["s2"], ["scc"])
    S("s_cbranch_scc1 L_k1_end", ["scc"])
    if "map0" in FLAGS:
        S("s_and_b32 s46, s2, 7", ["s2"], ["s46"])
        S("s_lshr_b32 s47, s2, 3", ["s2"], ["s47"])
        S("s_and_b32 s48, s47, 15", ["s47"], ["s48"])
        S("s_lshr_b32 s49, s47, 4", ["s47"], ["s49"])
    else:
        S("s_and_b32 s46, s2, 3", ["s2"], ["s46"])
        S("s_lshl_b32 s46, s46, 1", ["s46"], ["s46"])
        S("s_lshr_b32 s3, s2, 7", ["s2"], ["s3"])
        S("s_add_u32 s46, s46, s3", ["s46", "s3"], ["s46"])
        S("s_bfe_u32 s48, s2, 0x40003", ["s2"], ["s48"])
        S("s_bfe_u32 s49, s2, 0x10002", ["s2"], ["s49"])
        S("s_lshl_b32 s47, s49, 4", ["s49"], ["s47"])
        S("s_add_u32 s47, s47, s48", ["s47", "s48"], ["s47"])
    S("s_mul_i32 s3, s49, 40", ["s49"], ["s3"])
    S("s_add_u32 s4, s0, s3", ["s0", "s3"], ["s4"])
    S("s_addc_u32 s5, s1, 0", ["s1"], ["s5"])
    p.other("s_load_dwordx8 s[8:15], s[4:5], 0")
    p.other("s_load_dwordx2 s[18:19], s[4:5], 32")
    p.other("s_load_dwordx2 s[16:17], s[0:1], 96")
    V("v_lshrrev_b32 v254, 6, v0", ["v0"], ["v254"])
    V("v_and_b32 v255, 63, v0", ["v0"], ["v255"])
    V("v_readfirstlane_b32 s44, v254", ["v254"], ["s44"])
    S("s_lshl_b32 s45, s46, 2", ["s46"], ["s45"])
    S("s_add_u32 s45, s45, s44", ["s45", "s44"], ["s45"])
    for s_ in range(1, 8):
        S(f"s_mov_b32 s{50 + s_}, {s_ * 8192}", [], [f"s{50 + s_}"])
    for kt in range(1, 6):
        S(f"s_mov_b32 s{58 + kt}, {kt * 4096}", [], [f"s{58 + kt}"])
    cexp = (128.0 ** -0.5) * math.log2(math.e)
    S(f"s_mov_b32 s64, {f32bits(cexp):#x}", [], ["s64"])
    S("s_mov_b32 s65, 0x05040100", [], ["s65"])
    S("s_mov_b32 s66, 0x07060302", [], ["s66"])
    S("s_lshl_b32 s67, s44, 11", ["s44"], ["s67"])

    def sR(s_):
        return "0" if s_ == 0 else f"s{50 + s_}"

    def sK(kt):
        return "0" if kt == 0 else f"s{58 + kt}"

    L = "v255"
    V(f"v_lshrrev_b32 v248, 4, {L}", [L], ["v248"])
    V(f"v_and_b32 v249, 15, {L}", [L], ["v249"])
    V("v_and_b32 v250, 3, v249", ["v249"], ["v250"])
    V("v_lshrrev_b32 v251, 2, v249", ["v249"], ["v251"])
    V("v_lshl_add_u32 v250, v250, 2, v251", ["v250", "v251"], ["v250"])
    V("v_lshlrev_b32 v250, 4, v250", ["v250"], ["v250"])
    vW, vK, vV = "v224", "v225", "v226"
    vXd = ["v227", "v228"]
    vXr = [["v229", "v230"], ["v231", "v232"]]
    vWo, vOw, vOr, vSt = "v252", "v253", "v254", "v253"
    V(f"v_lshl_add_u32 {vW}, v248, 16, v250", ["v248", "v250"], [vW])
    V(f"v_lshl_add_u32 {vV}, v248, 10, v250", ["v248", "v250"], [vV])
    V("v_lshlrev_b32 v251, 4, v248", ["v248"], ["v251"])
    V(f"v_lshl_add_u32 {vK}, v249, 8, v251", ["v249", "v251"], [vK])
    S("s_lshl_b32 s3, s44, 1", ["s44"], ["s3"])
    for c in range(2):
        S(f"s_add_u32 s70, s3, {c}", ["s3"], ["s70"])
        V(f"v_xor_b32 v251, s70, {L}", ["s70", L], ["v251"])
        V("v_lshlrev_b32 v251, 4, v251", ["v251"], ["v251"])
        V(f"v_add_u32 {vXd[c]}, s67, v251", ["s67", "v251"], [vXd[c]])
    p.other("s_waitcnt lgkmcnt(0)")
    S("s_mul_i32 s3, s48, 98304", ["s48"], ["s3"])
    S("s_add_u32 s20, s8, s3", ["s8", "s3"], ["s20"])
    S("s_addc_u32 s21, s9, 0", ["s9"], ["s21"])
    S("s_mov_b32 s22, 98304", [], ["s22"])
    S("s_mov_b32 s23, 0x20000", [], ["s23"])
    S("s_lshl_b32 s3, s45, 8", ["s45"], ["s3"])
    S("s_add_u32 s96, s14, s3", ["s14", "s3"], ["s96"])
    S("s_addc_u32 s97, s15, 0", ["s15"], ["s97"])
    if "norot" in FLAGS:
        S("s_mov_b32 s98, 0", [], ["s98"])
        S("s_mov_b32 s101, 0", [], ["s101"])
    else:
        S("s_and_b32 s98, s48, 7", ["s48"], ["s98"])
        S("s_lshl_b32 s98, s98, 1", ["s98"], ["s98"])
        S("s_mov_b32 s101, s48", ["s48"], ["s101"])
    S("s_lshr_b32 s50, s98, 1", ["s98"], ["s50"])
    S("s_mov_b32 s58, s101", ["s101"], ["s58"])
    S("s_mov_b32 s26, 262144", [], ["s26"])
    S("s_mov_b32 s27, 0x20000", [], ["s27"])

    RING = [0, 32, 64, 96]
    BF = 128
    T = 176
    KV = 192

    def w_loads(dst, first):
        out = []
        q.salu("s_lshl_b32 s71, s98, 18", ["s98"], ["s71"])
        q.salu("s_add_u32 s24, s96, s71", ["s96", "s71"], ["s24"])
        q.salu("s_addc_u32 s25, s97, 0", ["s97"], ["s25"])
        q.salu("s_add_u32 s98, s98, 1", ["s98"], ["s98"])
        q.salu("s_and_b32 s98, s98, 15", ["s98"], ["s98"])
        for s_ in range(8):
            so = sR(s_)
            q.vload(f"buffer_load_dwordx4 {rng('v', dst + 4 * s_, 4)}, {vW}, s[24:27], {so} offen{NTW}",
                    [vW] + R("s", 24, 4) + ([so] if s_ else []), R("v", dst + 4 * s_, 4))
            out.append(g.take())
        return out

    def kfrag(kt, r):
        n = kt * 4 + r
        return ("a", 192 + 4 * n) if n < 16 else ("v", KV + 4 * (n - 16))

    stamp(p, 0)
    S("s_lshl_b32 s68, s44, 14", ["s44"], ["s68"])
    S("s_add_u32 s68, s68, 98304", ["s68"], ["s68"])
    S("s_lshl_b32 s69, s48, 5", ["s48"], ["s69"])
    S("s_lshl_b32 s3, s44, 3", ["s44"], ["s3"])
    S("s_add_u32 s69, s69, s3", ["s69", "s3"], ["s69"])
    S("s_lshl_b32 s3, s69, 13", ["s69"], ["s3"])
    S("s_lshl_b32 s70, s46, 10", ["s46"], ["s70"])
    S("s_add_u32 s3, s3, s70", ["s3", "s70"], ["s3"])
    S("s_add_u32 s72, s14, s3", ["s14", "s3"], ["s72"])
    S("s_addc_u32 s73, s15, 0", ["s15"], ["s73"])
    S("s_mov_b32 s74, 65536", [], ["s74"])
    S("s_mov_b32 s75, 0x20000", [], ["s75"])
    S("s_mov_b32 m0, s68", ["s68"], ["m0"])

    V(f"v_lshlrev_b32 {vOr}, 4, {L}", [L], [vOr])
    if "notouch" not in FLAGS:
        for r in range(8):
            so = sR(r)
            p.dma(f"buffer_load_dwordx4 {vOr}, s[72:75], {so} offen lds", [vOr] + R("s", 72, 4) + ([so] if r else []))
    for it in w_loads(RING[0], True):
        p.ins.extend(it)
    if "st1" in FLAGS:
        stamp(p, 1)
    for m in range(12):
        for c in range(2):
            off = (8 * m + c) * 1024
            S(f"s_add_u32 m0, s67, {off}", ["s67"], ["m0"])
            S(f"s_mov_b32 s70, {off}", [], ["s70"])
            p.dma(f"buffer_load_dwordx4 {vXd[c]}, s[20:23], s70 offen{NTX} lds", [vXd[c], "s70"] + R("s", 20, 4), tag="x")
    if "st1" in FLAGS:
        stamp(p, 2)
    if "oldstart" in FLAGS:
        for st in range(1, 4):
            for it in w_loads(RING[st], False):
                p.ins.extend(it)
            if "st1" in FLAGS:
                stamp(p, 2 + st)
    S("s_lshl_b32 s3, s48, 5", ["s48"], ["s3"])
    S("s_add_u32 s3, s3, s45", ["s3", "s45"], ["s3"])
    S("s_mul_i32 s3, s3, 24576", ["s3"], ["s3"])
    S("s_add_u32 s28, s10, s3", ["s10", "s3"], ["s28"])
    S("s_addc_u32 s29, s11, 0", ["s11"], ["s29"])
    S("s_mov_b32 s30, 24576", [], ["s30"])
    S("s_mov_b32 s31, 0x20000", [], ["s31"])
    S("s_add_u32 s32, s12, s3", ["s12", "s3"], ["s32"])
    S("s_addc_u32 s33, s13, 0", ["s13"], ["s33"])
    S("s_mov_b32 s34, 24576", [], ["s34"])
    S("s_mov_b32 s35, 0x20000", [], ["s35"])
    S("s_lshl_b32 s3, s47, 3", ["s47"], ["s3"])
    S("s_add_u32 s3, s3, s46", ["s3", "s46"], ["s3"])
    S("s_mul_i32 s3, s3, 98304", ["s3"], ["s3"])
    S("s_add_u32 s36, s16, s3", ["s16", "s3"], ["s36"])
    S("s_addc_u32 s37, s17, 0", ["s17"], ["s37"])
    S("s_mov_b32 s38, 98304", [], ["s38"])
    S("s_mov_b32 s39, 0x20000", [], ["s39"])
    S("s_lshl_b32 s3, s46, 19", ["s46"], ["s3"])
    S("s_add_u32 s99, s18, s3", ["s18", "s3"], ["s99"])
    S("s_addc_u32 s100, s19, 0", ["s19"], ["s100"])
    S("s_mov_b32 s42, 32768", [], ["s42"])
    S("s_mov_b32 s43, 0x20000", [], ["s43"])
    V("v_and_b32 v250, 7, v249", ["v249"], ["v250"])
    V("v_lshlrev_b32 v251, 10, v249", ["v249"], ["v251"])
    for par in range(2):
        V(f"v_add_u32 v246, {4 * par}, v248", ["v248"], ["v246"])
        V("v_xor_b32 v246, v246, v250", ["v246", "v250"], ["v246"])
        V(f"v_lshl_add_u32 {vXr[par][0]}, v246, 4, v251", ["v246", "v251"], [vXr[par][0]])
        V(f"v_add_u32 {vXr[par][1]}, 49152, {vXr[par][0]}", [vXr[par][0]], [vXr[par][1]])
    S("s_mul_i32 s3, s44, 24576", ["s44"], ["s3"])
    V(f"v_lshlrev_b32 {vOr}, 4, {L}", [L], [vOr])
    V(f"v_add_u32 {vOw}, s3, {vOr}", ["s3", vOr], [vOw])
    S("s_lshl_b32 s3, s44, 8", ["s44"], ["s3"])
    V("v_lshlrev_b32 v251, 4, v249", ["v249"], ["v251"])
    V(f"v_lshl_add_u32 {vWo}, v248, 13, v251", ["v248", "v251"], [vWo])
    V(f"v_add_u32 {vWo}, s3, {vWo}", ["s3", vWo], [vWo])

    def acc(j, qt):
        return ("a", (qt * 8 + j) * 4)

    def perms(raw, m, tdst):
        out = []
        for hi in range(2):
            for pp in range(4):
                a = raw + 4 * (2 * pp) + m
                b = raw + 4 * (2 * pp + 1) + m
                d = tdst + 4 * hi + pp
                sel = "s66" if hi else "s65"
                q.valu(f"v_perm_b32 v{d}, v{b}, v{a}, {sel}", [f"v{a}", f"v{b}", sel], [f"v{d}"])
                out.append(g.take())
        return out

    def x_reads(step, bf):
        out = []
        q.salu(f"s_add_u32 s71, s50, {step >> 1}", ["s50"], ["s71"])
        q.salu("s_and_b32 s71, s71, 7", ["s71"], ["s71"])
        q.salu("s_lshl_b32 s71, s71, 7", ["s71"], ["s71"])
        for hf in range(2):
            q.valu(f"v_add_u32 v{233 + hf}, s71, {vXr[step & 1][hf]}", ["s71", vXr[step & 1][hf]], [f"v{233 + hf}"])
        out.append(g.take())
        for qt in range(6):
            ar = f"v{233 + qt // 3}"
            d = bf + 4 * qt
            q.dsr(f"ds_read_b128 {rng('v', d, 4)}, {ar} offset:{(qt % 3) * 16384}",
                  [ar], R("v", d, 4))
            out.append(g.take())
        return out

    def gemm(ring, bfb, tb, b_reads, next_loads, pre_done=False, stamps=None, extra=None):
        if not pre_done:
            for it in b_reads(0, bfb):
                p.ins.extend(it)
        for it in perms(ring[0], 0, tb):
            p.ins.extend(it)
        for s_ in range(16):
            bf = bfb + 24 * (s_ & 1)
            for m in range(4):
                tcur = tb + 8 * (m & 1)
                tnext = tb + 8 * ((m + 1) & 1)
                mf = []
                for qt in range(6):
                    for jj in range(2):
                        q.mfma16(acc(2 * m + jj, qt), ("v", tcur + 4 * jj), ("v", bf + 4 * qt),
                                 None if s_ == 0 else acc(2 * m + jj, qt))
                        mf.append(g.take())
                fl = []
                if m < 3:
                    fl += perms(ring[s_ % 4], m + 1, tnext)
                elif s_ + 1 < 16:
                    fl += perms(ring[(s_ + 1) % 4], 0, tnext)
                if m == 0 and s_ + 1 < 16:
                    fl += b_reads(s_ + 1, bfb + 24 * ((s_ + 1) & 1))
                if m == 3:
                    fl = next_loads(s_) + fl
                if extra:
                    fl = extra(s_, m) + fl
                p.ins.extend(spread(mf, fl))
            if stamps and s_ in stamps:
                stamp(p, stamps[s_])

    def v_loads(u, dst):
        out = []
        for s_ in range(8):
            so = sK(2 * u + (s_ >> 2))
            q.vload(f"buffer_load_dwordx4 {rng('v', dst + 4 * s_, 4)}, {vV}, s[32:35], {so} offen offset:{(s_ & 3) * 256}{NTKV}",
                    [vV] + R("s", 32, 4) + ([so] if so != "0" else []), R("v", dst + 4 * s_, 4))
            out.append(g.take())
        return out

    def k_loads(ns):
        out = []
        for n in ns:
            kt, r = n >> 2, n & 3
            pf, b0 = kfrag(kt, r)
            so = sK(kt)
            q.vload(f"buffer_load_dwordx4 {rng(pf, b0, 4)}, {vK}, s[28:31], {so} offen offset:{r * 64}{NTKV}",
                    [vK] + R("s", 28, 4) + ([so] if kt else []), R(pf, b0, 4))
            out.append(g.take())
        return out

    def v_dma(ns):
        out = []
        for n in ns:
            u, s_ = n >> 3, n & 7
            so = sK(2 * u + (s_ >> 2))
            q.salu(f"s_add_u32 m0, s68, {n * 1024 - (s_ & 3) * 256}", ["s68"], ["m0"])
            q.dma(f"buffer_load_dwordx4 {vV}, s[32:35], {so} offen offset:{(s_ & 3) * 256}{NTKV} lds",
                  [vV] + R("s", 32, 4) + ([so] if so != "0" else []), tag="vd")
            out.append(g.take())
        return out

    def next_a(s_):
        out = []
        if s_ + 4 < 16 and "nold" not in FLAGS:
            out += w_loads(RING[s_ % 4], False)
        for n in range(KVN * s_, min(KVN * s_ + KVN, 40)):
            out += k_loads([n]) if n < 24 else v_dma([n - 24])
        if s_ == 14:
            out += v_loads(2, RING[2])
        return out

    def touch_q():
        out = []
        q.salu("s_lshl_b32 s3, s69, 10", ["s69"], ["s3"])
        q.salu("s_add_u32 s72, s99, s3", ["s99", "s3"], ["s72"])
        q.salu("s_addc_u32 s73, s100, 0", ["s100"], ["s73"])
        out.append(g.take())
        return out

    if "oldstart" in FLAGS:
        for it in touch_q():
            p.ins.extend(it)

    def extra_a(s_, m):
        if "oldstart" in FLAGS:
            return []
        if s_ == 0 and m < 3:
            return w_loads(RING[m + 1], False)
        if s_ == 1 and m == 1:
            return touch_q()
        return []
    if "st1" in FLAGS:
        stamp(p, 6)
        p.barrier(needs=["x"])
        stamp(p, 7)
        gemm(RING, BF, T, x_reads, next_a, extra=extra_a)
    elif "st0" in FLAGS:
        stamp(p, 1)
        p.valu("v_mov_b32 v246, v0", ["v0"], ["v246"])
        stamp(p, 2)
        p.other("s_nop 0", needs=["x"])
        stamp(p, 3)
        p.barrier(needs=["x"])
        stamp(p, 4)
        gemm(RING, BF, T, x_reads, next_a, stamps={0: 5, 1: 6, 2: 7}, extra=extra_a)
    else:
        p.barrier(needs=["x"])
        stamp(p, 1)
        gemm(RING, BF, T, x_reads, next_a, stamps={3: 2, 9: 3}, extra=extra_a)
        stamp(p, 4)
    p.barrier()

    QF = 176
    SACC = [128, 152]
    PB = 224
    STG = 236
    TMP = 244
    VT = [RING[3], RING[0], RING[1]]
    main = []
    fill = []

    def one(gate):
        for i in g.take():
            fill.append(([i], gate))

    def conv(qt, r, dst, gate):
        for jj in range(4):
            t0, t1 = TMP + 2 * (jj & 1), TMP + 2 * (jj & 1) + 1
            a0 = acc(2 * jj, qt)[1] + r
            a1 = acc(2 * jj + 1, qt)[1] + r
            q.valu(f"v_accvgpr_read_b32 v{t0}, a{a0}", [f"a{a0}"], [f"v{t0}"])
            q.valu(f"v_accvgpr_read_b32 v{t1}, a{a1}", [f"a{a1}"], [f"v{t1}"])
            q.valu(f"v_cvt_pk_bf16_f32 v{dst + jj}, v{t0}, v{t1}", [f"v{t0}", f"v{t1}"], [f"v{dst + jj}"])
        one(gate)

    order = ["S0", "S1", "S2", "P0", "S3", "P1", "S4", "P2", "S5", "P3", "P4", "P5"]
    mstart = {nm: 24 * k for k, nm in enumerate(order)}

    def s_part_end(qt, r):
        return mstart[f"S{qt}"] + 6 * r + 5

    def m_end(nm):
        return mstart[nm] + 23

    fidx = {}

    def C(qt):
        for r in range(4):
            gate = -1 if qt == 0 else s_part_end(qt - 1, r)
            conv(qt, r, QF + 4 * r, gate)
            fidx[("C", qt, r)] = len(fill) - 1

    def M(qt):
        b = SACC[qt & 1]
        v = [f"v{b + i}" for i in range(24)]
        gate = min(m_end(f"S{qt}") + 2, 24 * 12 - 1)
        q.valu(f"v_max3_f32 v248, {v[0]}, {v[1]}, {v[2]}", v[0:3], ["v248"])
        i = 3
        while i < 24:
            j = min(i + 1, 23)
            q.valu(f"v_max3_f32 v248, v248, {v[i]}, {v[j]}", ["v248", v[i], v[j]], ["v248"])
            i += 2
        q.valu("v_mov_b32 v249, v248", ["v248"], ["v249"])
        q.perm("v_permlane32_swap_b32 v248, v249", ["v248", "v249"], ["v248", "v249"])
        q.valu("v_max_f32 v248, v248, v249", ["v248", "v249"], ["v248"])
        q.valu("v_mov_b32 v249, v248", ["v248"], ["v249"])
        q.perm("v_permlane16_swap_b32 v248, v249", ["v248", "v249"], ["v248", "v249"])
        q.valu("v_max_f32 v248, v248, v249", ["v248", "v249"], ["v248"])
        q.valu("v_mul_f32 v248, s64, v248", ["s64", "v248"], ["v248"])
        for i in range(24):
            q.valu(f"v_fma_f32 {v[i]}, {v[i]}, s64, -v248", [v[i], "s64", "v248"], [v[i]])
            q.trans(f"v_exp_f32 {v[i]}, {v[i]}", [v[i]], [v[i]])
        q.valu(f"v_add_f32 v250, {v[0]}, {v[1]}", [v[0], v[1]], ["v250"])
        q.valu(f"v_add_f32 v251, {v[2]}, {v[3]}", [v[2], v[3]], ["v251"])
        for i in range(4, 24):
            t = "v250" if i & 1 else "v251"
            q.valu(f"v_add_f32 {t}, {t}, {v[i]}", [t, v[i]], [t])
        q.valu("v_add_f32 v250, v250, v251", ["v250", "v251"], ["v250"])
        q.valu("v_mov_b32 v251, v250", ["v250"], ["v251"])
        q.perm("v_permlane32_swap_b32 v250, v251", ["v250", "v251"], ["v250", "v251"])
        q.valu("v_add_f32 v250, v250, v251", ["v250", "v251"], ["v250"])
        q.valu("v_mov_b32 v251, v250", ["v250"], ["v251"])
        q.perm("v_permlane16_swap_b32 v250, v251", ["v250", "v251"], ["v250", "v251"])
        q.valu("v_add_f32 v250, v250, v251", ["v250", "v251"], ["v250"])
        q.trans("v_rcp_f32 v250, v250", ["v250"], ["v250"])
        for i in range(24):
            q.valu(f"v_mul_f32 {v[i]}, {v[i]}, v250", [v[i], "v250"], [v[i]])
        one(gate)
        gate2 = gate if qt == 0 else max(gate, m_end(f"P{qt - 1}"))
        for pp in range(12):
            q.valu(f"v_cvt_pk_bf16_f32 v{PB + pp}, {v[2 * pp]}, {v[2 * pp + 1]}", [v[2 * pp], v[2 * pp + 1]], [f"v{PB + pp}"])
        one(gate2)
        fidx[("M", qt)] = len(fill) - 1

    def VP():
        q.valu(f"v_add_u32 v248, s68, {vOr}", ["s68", vOr], ["v248"])
        for n in range(16):
            d = RING[n >> 3] + 4 * (n & 7)
            q.dsr(f"ds_read_b128 {rng('v', d, 4)}, v248 offset:{n * 1024}", ["v248"], R("v", d, 4), needs=["vd"], tag="vr")
        one(-1)
        if "notouch" not in FLAGS:
            q.salu("s_mov_b32 m0, s68", ["s68"], ["m0"])
            for r in range(8):
                so = "s59" if r >= 4 else "0"
                q.dma(f"buffer_load_dwordx4 {vOr}, s[72:75], {so} offen offset:{(r & 3) * 1024} lds",
                      [vOr] + R("s", 72, 4) + ([so] if r >= 4 else []), needs=["vr"])
            one(-1)
        for u in range(3):
            for m in range(4):
                for it in perms(RING[u], m, VT[u] + 8 * m):
                    fill.append((it, -1))
        fidx["VP"] = len(fill) - 1

    def OC(qt):
        gate = min(m_end(f"P{qt}") + 2, 24 * 12 - 1)
        for r in range(4):
            d = STG + 4 * (r & 1)
            conv(qt, r, d, gate)
            q.dsw(f"ds_write_b128 {vOw}, {rng('v', d, 4)} offset:{(r * 6 + qt) * 1024}", [vOw] + R("v", d, 4), tag="o")
            one(gate)

    RINGC = [RING[2], KV, 128, RING[3]]
    BFC = 0
    TC = 48

    def wo_loads(dst, first):
        out = []
        q.salu("s_lshl_b32 s71, s101, 15", ["s101"], ["s71"])
        q.salu("s_add_u32 s40, s99, s71", ["s99", "s71"], ["s40"])
        q.salu("s_addc_u32 s41, s100, 0", ["s100"], ["s41"])
        q.salu("s_add_u32 s101, s101, 1", ["s101"], ["s101"])
        q.salu("s_and_b32 s101, s101, 15", ["s101"], ["s101"])
        for s_ in range(8):
            so = "s59" if s_ >= 4 else "0"
            q.vload(f"buffer_load_dwordx4 {rng('v', dst + 4 * s_, 4)}, {vWo}, s[40:43], {so} offen offset:{(s_ & 3) * 1024}{NTW}",
                    [vWo] + R("s", 40, 4) + ([so] if s_ >= 4 else []), R("v", dst + 4 * s_, 4))
            out.append(g.take())
        return out

    def WO(k, gate):
        for it in wo_loads(RINGC[k], k == 0):
            fill.append((it, gate))

    C(0); C(1); M(0); C(2); VP(); WO(0, -1); M(1); C(3); OC(0); M(2); C(4); OC(1); M(3); C(5)
    WO(1, m_end("S5")); OC(2); M(4); OC(3); M(5); WO(2, -1); OC(4); WO(3, m_end("P5")); OC(5)

    for nm in order:
        qt = int(nm[1])
        if nm[0] == "S":
            for r in range(4):
                gate = fidx[("C", qt, r)]
                if qt >= 2:
                    gate = max(gate, fidx[("M", qt - 2)])
                for kt in range(6):
                    d = ("v", SACC[qt & 1] + 4 * kt)
                    q.mfma16(d, kfrag(kt, r), ("v", QF + 4 * r), None if r == 0 else d)
                    main.append((g.take(), gate))
        else:
            gate = max(fidx[("M", qt)], fidx["VP"])
            for u in range(3):
                for j in range(8):
                    q.mfma16(acc(j, qt), ("v", VT[u] + 4 * j), ("v", PB + 4 * u), None if u == 0 else acc(j, qt))
                    main.append((g.take(), gate))
    p.ins.extend(gated_merge(main, fill, 5))
    if "st0" not in FLAGS:
        stamp(p, 5)
    p.barrier(needs=["o"])


    def o_reads(step, bf):
        out = []
        q.salu(f"s_add_u32 s71, s58, {step}", ["s58"], ["s71"])
        q.salu("s_and_b32 s71, s71, 15", ["s71"], ["s71"])
        q.salu("s_mul_i32 s71, s71, 6144", ["s71"], ["s71"])
        q.valu(f"v_add_u32 v224, s71, {vOr}", ["s71", vOr], ["v224"])
        out.append(g.take())
        for qt in range(6):
            d = bf + 4 * qt
            q.dsr(f"ds_read_b128 {rng('v', d, 4)}, v224 offset:{qt * 1024}", ["v224"], R("v", d, 4))
            out.append(g.take())
        return out

    def next_c(s_):
        if s_ + 4 < 16 and "nold" not in FLAGS:
            return wo_loads(RINGC[s_ % 4], False)
        return []

    gemm(RINGC, BFC, TC, o_reads, next_c)
    if "st0" not in FLAGS:
        stamp(p, 6)
    k = 0
    for qt in range(6):
        for r in range(4):
            d = 64 + 4 * (k % 16)
            k += 1
            for jj in range(4):
                t0 = 228 + 2 * jj
                a0 = acc(2 * jj, qt)[1] + r
                a1 = acc(2 * jj + 1, qt)[1] + r
                V(f"v_accvgpr_read_b32 v{t0}, a{a0}", [f"a{a0}"], [f"v{t0}"])
                V(f"v_accvgpr_read_b32 v{t0 + 1}, a{a1}", [f"a{a1}"], [f"v{t0 + 1}"])
                V(f"v_cvt_pk_bf16_f32 v{d + jj}, v{t0}, v{t0 + 1}", [f"v{t0}", f"v{t0 + 1}"], [f"v{d + jj}"])
            so = sK(qt)
            p.vstore(f"buffer_store_dwordx4 {rng('v', d, 4)}, {vSt}, s[36:39], {so} offen offset:{r * 1024}{NTS}",
                     R("v", d, 4) + [vSt] + R("s", 36, 4) + ([so] if qt else []))
    if PROF:
        p.waitall()
    if "st0" not in FLAGS:
        stamp(p, 7)
    dump_stamps(p, 8)
    p.label("L_k1_end")
    p.other("s_endpgm")
    return p


def gen_k2():
    p = Prog()
    S = p.salu
    V = p.valu
    S("s_cmp_ge_u32 s2, 192", ["s2"], ["scc"])
    S("s_cbranch_scc1 L_k2_end", ["scc"])
    p.other("s_load_dwordx2 s[10:11], s[0:1], 80")
    p.other("s_load_dwordx2 s[16:17], s[0:1], 96")
    V("v_lshrrev_b32 v254, 6, v0", ["v0"], ["v254"])
    V("v_and_b32 v255, 63, v0", ["v0"], ["v255"])
    V("v_readfirstlane_b32 s44, v254", ["v254"], ["s44"])
    S("s_mul_i32 s3, s2, 43691", ["s2"], ["s3"])
    S("s_lshr_b32 s47, s3, 18", ["s3"], ["s47"])
    S("s_mul_i32 s3, s47, 6", ["s47"], ["s3"])
    S("s_sub_u32 s46, s2, s3", ["s2", "s3"], ["s46"])
    S("s_and_b32 s48, s47, 15", ["s47"], ["s48"])
    S("s_lshr_b32 s49, s47, 4", ["s47"], ["s49"])
    p.other("s_waitcnt lgkmcnt(0)")
    S("s_mul_i32 s3, s47, 786432", ["s47"], ["s3"])
    S("s_add_u32 s36, s16, s3", ["s16", "s3"], ["s36"])
    S("s_addc_u32 s37, s17, 0", ["s17"], ["s37"])
    S("s_mov_b32 s38, 786432", [], ["s38"])
    S("s_mov_b32 s39, 0x20000", [], ["s39"])
    S("s_mov_b32 s28, s10", ["s10"], ["s28"])
    S("s_mov_b32 s29, s11", ["s11"], ["s29"])
    S("s_mov_b32 s30, 3145728", [], ["s30"])
    S("s_mov_b32 s31, 0x20000", [], ["s31"])
    S("s_mul_i32 s50, s44, 24576", ["s44"], ["s50"])
    S("s_lshl_b32 s3, s46, 12", ["s46"], ["s3"])
    S("s_add_u32 s50, s50, s3", ["s50", "s3"], ["s50"])
    V("v_lshlrev_b32 v250, 4, v255", ["v255"], ["v250"])
    V("v_add_u32 v250, s50, v250", ["s50", "v250"], ["v250"])
    for hg in range(1, 8):
        S(f"s_mov_b32 s{51 + hg}, {hg * 98304}", [], [f"s{51 + hg}"])
    for hg in range(8):
        for r in range(4):
            d = (hg * 4 + r) * 4
            so = "0" if hg == 0 else f"s{51 + hg}"
            p.vload(f"buffer_load_dwordx4 {rng('v', d, 4)}, v250, s[36:39], {so} offen offset:{r * 1024}{NTP}",
                    ["v250"] + R("s", 36, 4) + ([so] if hg else []), R("v", d, 4))
    S("s_mul_i32 s3, s48, 96", ["s48"], ["s3"])
    S("s_lshl_b32 s50, s46, 4", ["s46"], ["s50"])
    S("s_add_u32 s3, s3, s50", ["s3", "s50"], ["s3"])
    S("s_lshl_b32 s3, s3, 11", ["s3"], ["s3"])
    S("s_lshl_b32 s50, s49, 10", ["s49"], ["s50"])
    S("s_add_u32 s3, s3, s50", ["s3", "s50"], ["s3"])
    S("s_lshl_b32 s50, s44, 8", ["s44"], ["s50"])
    S("s_add_u32 s3, s3, s50", ["s3", "s50"], ["s3"])
    V("v_and_b32 v251, 15, v255", ["v255"], ["v251"])
    V("v_lshrrev_b32 v252, 4, v255", ["v255"], ["v252"])
    V("v_lshlrev_b32 v252, 6, v252", ["v252"], ["v252"])
    V("v_lshl_add_u32 v251, v251, 11, v252", ["v251", "v252"], ["v251"])
    V("v_add_u32 v251, s3, v251", ["s3", "v251"], ["v251"])
    S("s_mov_b32 s60, 0xffff0000", [], ["s60"])
    ACC = 128
    for hg in range(8):
        for r in range(4):
            for jj in range(4):
                s_ = (hg * 4 + r) * 4 + jj
                lo = ACC + (r * 4 + jj) * 2
                if hg == 0:
                    V(f"v_lshlrev_b32 v{lo}, 16, v{s_}", [f"v{s_}"], [f"v{lo}"])
                    V(f"v_and_b32 v{lo + 1}, s60, v{s_}", ["s60", f"v{s_}"], [f"v{lo + 1}"])
                else:
                    V(f"v_lshlrev_b32 v248, 16, v{s_}", [f"v{s_}"], ["v248"])
                    V(f"v_and_b32 v249, s60, v{s_}", ["s60", f"v{s_}"], ["v249"])
                    V(f"v_add_f32 v{lo}, v{lo}, v248", [f"v{lo}", "v248"], [f"v{lo}"])
                    V(f"v_add_f32 v{lo + 1}, v{lo + 1}, v249", [f"v{lo + 1}", "v249"], [f"v{lo + 1}"])
    for r in range(4):
        for jj in range(4):
            lo = ACC + (r * 4 + jj) * 2
            V(f"v_cvt_pk_bf16_f32 v{160 + r * 4 + jj}, v{lo}, v{lo + 1}", [f"v{lo}", f"v{lo + 1}"], [f"v{160 + r * 4 + jj}"])
        p.vstore(f"buffer_store_dwordx4 {rng('v', 160 + 4 * r, 4)}, v251, s[28:31], 0 offen offset:{r * 16}",
                 R("v", 160 + 4 * r, 4) + ["v251"] + R("s", 28, 4))
    p.label("L_k2_end")
    p.other("s_endpgm")
    return p


HEADER = """; Two-kernel implementation (generated by a hand-written python generator).
; @launch kernel=k1_kernel grid=(256,1,1) block=(256,1,1) lds=163840
; @launch kernel=k2_kernel grid=(192,1,1) block=(256,1,1) lds=0
.amdgcn_target "amdgcn-amd-amdhsa--gfx950"
.text
"""


def kd(name, nvgpr, accum):
    return f""".amdhsa_kernel {name}
  .amdhsa_next_free_vgpr {nvgpr}
  .amdhsa_next_free_sgpr 102
  .amdhsa_accum_offset {accum}
  .amdhsa_group_segment_fixed_size 0
  .amdhsa_kernarg_size 104
  .amdhsa_user_sgpr_count 2
  .amdhsa_user_sgpr_kernarg_segment_ptr 1
  .amdhsa_system_sgpr_workgroup_id_x 1
.end_amdhsa_kernel
"""


def main():
    t1, i1 = finalize(gen_k1())
    t2, i2 = finalize(gen_k2())
    s = HEADER
    for name, t in (("k1_kernel", t1), ("k2_kernel", t2)):
        s += f".globl {name}\n.p2align 8\n.type {name},@function\n{name}:\n{t}"
    s += '.section .rodata,"a"\n.p2align 6\n'
    s += kd("k1_kernel", 512, 256)
    s += ".p2align 6\n"
    s += kd("k2_kernel", 256, 256)
    open(OUT, "w").write(s)
    print("k1 instrs", len(i1), "k2 instrs", len(i2))


if __name__ == "__main__":
    main()
```

```python
import math
import struct
import sys

sys.path.insert(0, "work")
from asmgen import *

NAME = "concat_heads__gqa_block_cached__gqa_block_cached__near_ridge"
OUT = f"cdna_kernels/{NAME}.s"
PROF = len(sys.argv) > 1 and sys.argv[1] == "prof"
FLAGS = set(sys.argv[2:])
if PROF:
    OUT = "prof%s.s" % "".join(sys.argv[2:])
if len(sys.argv) > 1 and sys.argv[1] == "var":
    OUT = "var%s.s" % "".join(sys.argv[2:])


KVN = 3
for f_ in FLAGS:
    if f_.startswith("kv"):
        KVN = int(f_[2:])


NTKV = " nt" if "kvnt" in FLAGS else ""
NTX = " nt" if "ntx" in FLAGS else ""
NTW = " nt" if "ntw" in FLAGS else ""
NTS = " nt" if "nts" in FLAGS else ""
if "scs" in FLAGS:
    NTS = " sc1"
if "scs2" in FLAGS:
    NTS = " sc0 sc1"
NTP = " nt" if "ntp" in FLAGS else ""


NSP = "nsp" in FLAGS
FUSE = "fuse" in FLAGS or NSP
if FUSE and not NTS:
    NTS = " sc1"


def f32bits(x):
    return struct.unpack("<I", struct.pack("<f", x))[0]


def stamp(p, idx):
    if PROF:
        p.other(f"s_memtime s[{80 + 2 * idx}:{81 + 2 * idx}]")
        p.other("s_waitcnt lgkmcnt(0)")


def dump_stamps(p, n, wgs=(0, 9, 100, 255)):
    if not PROF:
        return
    p.other("s_load_dwordx2 s[76:77], s[0:1], 88")
    p.other("s_waitcnt lgkmcnt(0)")
    p.salu("s_mov_b32 s78, 256", [], ["s78"])
    p.salu("s_mov_b32 s79, 0x20000", [], ["s79"])
    p.salu("s_cmp_lg_u32 s44, 0", ["s44"], ["scc"])
    lab = f"L_nost_{id(p)}"
    p.salu(f"s_cbranch_scc1 {lab}", ["scc"])
    for k, wg in enumerate(wgs):
        l2 = f"L_st_{id(p)}_{k}"
        p.salu(f"s_cmp_lg_u32 s2, {wg}", ["s2"], ["scc"])
        p.salu(f"s_cbranch_scc1 {l2}", ["scc"])
        for i in range(n):
            p.salu(f"s_sub_u32 s3, s{80 + 2 * i}, s80", [f"s{80 + 2 * i}", "s80"], ["s3"])
            p.valu("v_mov_b32 v250, s3", ["s3"], ["v250"])
            p.valu(f"v_mov_b32 v251, {(k * 8 + i) * 4 + 128}", [], ["v251"])
            p.vstore("buffer_store_dword v250, v251, s[76:79], 0 offen", ["v250", "v251"] + R("s", 76, 4))
            p.waitall()
        p.label(l2)
    p.label(lab)


class G:
    def __init__(self):
        self.p = Prog()

    def take(self):
        r = self.p.ins
        self.p.ins = []
        return r


def gated_merge(main, fill, ratio):
    out = []
    mi = fi = 0
    while mi < len(main) or fi < len(fill):
        progressed = False
        if mi < len(main) and main[mi][1] < fi:
            out.extend(main[mi][0])
            mi += 1
            progressed = True
            k = 0
            while k < ratio and fi < len(fill) and fill[fi][1] < mi:
                out.extend(fill[fi][0])
                fi += 1
                k += 1
        else:
            if fi < len(fill) and fill[fi][1] < mi:
                out.extend(fill[fi][0])
                fi += 1
                progressed = True
        assert progressed, (mi, fi)
    return out


def spread(mf, fl):
    out = []
    n, m = len(mf), len(fl)
    k = 0
    for i, x in enumerate(mf):
        out.extend(x)
        tgt = ((i + 1) * m + n - 1) // n
        while k < min(tgt, m):
            out.extend(fl[k])
            k += 1
    return out


def fused_tail(p):
    S = p.salu
    V = p.valu
    O = p.other
    S("s_add_u32 s20, s16, 0x2000000", ["s16"], ["s20"])
    S("s_addc_u32 s21, s17, 0", ["s17"], ["s21"])
    S("s_mov_b32 s22, 4096", [], ["s22"])
    S("s_mov_b32 s23, 0x20000", [], ["s23"])
    S("s_mov_b32 s24, s76", ["s76"], ["s24"])
    S("s_mov_b32 s25, s77", ["s77"], ["s25"])
    S("s_mov_b32 s26, 3145728", [], ["s26"])
    S("s_mov_b32 s27, 0x20000", [], ["s27"])
    S("s_mul_i32 s3, s47, 786432", ["s47"], ["s3"])
    S("s_add_u32 s28, s16, s3", ["s16", "s3"], ["s28"])
    S("s_addc_u32 s29, s17, 0", ["s17"], ["s29"])
    S("s_mov_b32 s30, 786432", [], ["s30"])
    S("s_mov_b32 s31, 0x20000", [], ["s31"])
    for hg in range(1, 8):
        S(f"s_mov_b32 s{50 + hg}, {hg * 98304}", [], [f"s{50 + hg}"])
    S("s_mov_b32 s60, 0xffff0000", [], ["s60"])
    S("s_lshl_b32 s71, s47, 7", ["s47"], ["s71"])
    S("s_lshl_b32 s70, s46, 3", ["s46"], ["s70"])
    S("s_add_u32 s70, s70, s71", ["s70", "s71"], ["s70"])
    S("s_lshl_b32 s72, 1, s46", ["s46"], ["s72"])
    S("s_mul_i32 s61, s48, 196608", ["s48"], ["s61"])
    S("s_lshl_b32 s3, s49, 10", ["s49"], ["s3"])
    S("s_add_u32 s61, s61, s3", ["s61", "s3"], ["s61"])
    V("v_lshlrev_b32 v250, 4, v255", ["v255"], ["v250"])
    V("v_and_b32 v251, 15, v255", ["v255"], ["v251"])
    V("v_lshrrev_b32 v252, 4, v255", ["v255"], ["v252"])
    if NSP:
        V("v_and_b32 v246, 1, v252", ["v252"], ["v246"])
        V("v_lshrrev_b32 v252, 1, v252", ["v252"], ["v252"])
        V("v_lshlrev_b32 v252, 5, v252", ["v252"], ["v252"])
        V("v_lshl_add_u32 v252, v246, 6, v252", ["v246", "v252"], ["v252"])
    else:
        V("v_lshlrev_b32 v252, 6, v252", ["v252"], ["v252"])
    V("v_lshl_add_u32 v251, v251, 11, v252", ["v251", "v252"], ["v251"])
    V("v_lshl_add_u32 v249, v255, 3, s71", ["s71", "v255"], ["v249"])
    V("v_mov_b32 v248, s70", ["s70"], ["v248"])
    V("v_mov_b32 v247, 0", [], ["v247"])
    p.waitall()
    stamp(p, 5)
    p.barrier()
    O("s_cmp_lg_u32 s44, 0")
    O("s_cbranch_scc1 L_f_wait")
    O("s_mov_b64 exec, 1")
    O("v_mov_b32 v244, s6")
    O("v_mov_b32 v245, s7")
    O("s_nop 1")
    O("buffer_store_dwordx2 v[244:245], v248, s[20:23], 0 offen sc1")
    O("s_mov_b64 exec, 0xff")
    O("s_mov_b32 s73, 400")
    p.label("L_f_spin")
    O("buffer_load_dwordx2 v[240:241], v249, s[20:23], 0 offen sc1")
    O("s_waitcnt vmcnt(0)")
    O("v_and_b32 v242, 0x7fffffff, v241")
    O("v_cmp_eq_u32 vcc, s6, v240")
    O("v_cmp_eq_u32 s[70:71], s7, v242")
    O("s_nop 3")
    O("s_and_b32 s70, s70, vcc_lo")
    O("s_cmp_eq_u32 s70, 0xff")
    O("s_cbranch_scc1 L_f_all")
    O("s_sleep 1")
    O("s_sub_u32 s73, s73, 1")
    O("s_cmp_lg_u32 s73, 0")
    O("s_cbranch_scc1 L_f_spin")
    O("s_mov_b64 exec, 1")
    O("v_or_b32 v245, 0x80000000, v245")
    O("s_nop 1")
    O("buffer_store_dwordx2 v[244:245], v248, s[20:23], 0 offen sc1")
    O("s_waitcnt vmcnt(0)")
    O("s_mov_b64 exec, 0xff")
    O("buffer_load_dwordx2 v[240:241], v249, s[20:23], 0 offen sc1")
    O("s_waitcnt vmcnt(0)")
    O("v_and_b32 v242, 0x7fffffff, v241")
    O("v_cmp_eq_u32 vcc, s6, v240")
    O("v_cmp_eq_u32 s[70:71], s7, v242")
    O("s_nop 3")
    O("s_and_b32 s70, s70, vcc_lo")
    O("s_cmp_eq_u32 s70, 0xff")
    O("s_cbranch_scc1 L_f_all")
    O("s_mov_b32 s72, 0")
    O("s_branch L_f_pub")
    p.label("L_f_all")
    O("v_cmp_gt_i32 vcc, 0, v241")
    O("s_nop 3")
    O("s_or_b32 s72, s72, vcc_lo")
    p.label("L_f_pub")
    O("s_mov_b64 exec, 1")
    O("v_mov_b32 v248, s72")
    O("s_nop 1")
    O("ds_write_b32 v247, v248")
    O("s_waitcnt lgkmcnt(0)")
    O("s_mov_b64 exec, -1")
    p.label("L_f_wait")
    p.barrier()
    O("ds_read_b32 v248, v247")
    O("s_waitcnt lgkmcnt(0)")
    O("v_readfirstlane_b32 s72, v248")
    O("s_nop 3")
    stamp(p, 6)
    O("s_cmp_ge_u32 s44, 3")
    O("s_cbranch_scc1 L_k1_fin")
    p.label("L_f_loop")
    O("s_cmp_eq_u32 s72, 0")
    O("s_cbranch_scc1 L_k1_fin")
    O("s_ff1_i32_b32 s73, s72")
    O("s_bitset0_b32 s72, s73")
    O("s_mul_i32 s73, s73, 3")
    O("s_add_u32 s73, s73, s44")
    O("s_mul_i32 s3, s73, 43")
    O("s_lshr_b32 s70, s3, 8")
    O("s_mul_i32 s3, s70, 6")
    O("s_sub_u32 s71, s73, s3")
    if NSP:
        O("s_mul_i32 s3, s70, 24576")
        O("s_lshl_b32 s74, s71, 11")
        O("s_add_u32 s3, s3, s74")
    else:
        O("s_lshl_b32 s3, s73, 12")
    S("s_lshl_b32 s74, s71, 15", ["s71"], ["s74"])
    S("s_lshl_b32 s75, s70, 8", ["s70"], ["s75"])
    S("s_add_u32 s74, s74, s75", ["s74", "s75"], ["s74"])
    S("s_add_u32 s74, s74, s61", ["s74", "s61"], ["s74"])
    V("v_add_u32 v252, s3, v250", ["s3", "v250"], ["v252"])
    V("v_add_u32 v253, s74, v251", ["s74", "v251"], ["v253"])
    V("v_add_u32 v254, 12288, v252", ["v252"], ["v254"])
    for hg in range(8):
        for r in range(4):
            d = (hg * 4 + r) * 4
            so = "0" if hg == 0 else f"s{50 + hg}"
            va = "v254" if (NSP and r >= 2) else "v252"
            of = (r & 1) * 1024 if NSP else r * 1024
            p.vload(f"buffer_load_dwordx4 {rng('v', d, 4)}, {va}, s[28:31], {so} offen offset:{of} sc1",
                    [va] + R("s", 28, 4) + ([so] if hg else []), R("v", d, 4))
    ACC = 128
    for hg in range(8):
        for r in range(4):
            for jj in range(4):
                s_ = (hg * 4 + r) * 4 + jj
                lo = ACC + (r * 4 + jj) * 2
                if hg == 0:
                    V(f"v_lshlrev_b32 v{lo}, 16, v{s_}", [f"v{s_}"], [f"v{lo}"])
                    V(f"v_and_b32 v{lo + 1}, s60, v{s_}", ["s60", f"v{s_}"], [f"v{lo + 1}"])
                else:
                    t = 244 + 2 * (jj & 1)
                    V(f"v_lshlrev_b32 v{t}, 16, v{s_}", [f"v{s_}"], [f"v{t}"])
                    V(f"v_and_b32 v{t + 1}, s60, v{s_}", ["s60", f"v{s_}"], [f"v{t + 1}"])
                    V(f"v_pk_add_f32 v[{lo}:{lo + 1}], v[{lo}:{lo + 1}], v[{t}:{t + 1}]",
                      [f"v{lo}", f"v{lo + 1}", f"v{t}", f"v{t + 1}"], [f"v{lo}", f"v{lo + 1}"])
    if NSP:
        for H in range(2):
            for rr in range(2):
                for c in range(4):
                    lo = ACC + ((H * 2 + rr) * 4 + c) * 2
                    d = 160 + (H * 2 + (c >> 1)) * 4 + rr * 2 + (c & 1)
                    V(f"v_cvt_pk_bf16_f32 v{d}, v{lo}, v{lo + 1}", [f"v{lo}", f"v{lo + 1}"], [f"v{d}"])
            for st in range(2):
                d = 160 + (H * 2 + st) * 4
                for k in range(2):
                    p.perm(f"v_permlane32_swap_b32 v{d + k}, v{d + k + 2}", [f"v{d + k}", f"v{d + k + 2}"], [f"v{d + k}", f"v{d + k + 2}"])
            for st in range(2):
                d = 160 + (H * 2 + st) * 4
                p.vstore(f"buffer_store_dwordx4 {rng('v', d, 4)}, v253, s[24:27], 0 offen offset:{H * 128 + st * 16}",
                         R("v", d, 4) + ["v253"] + R("s", 24, 4))
    else:
        for r in range(4):
            for jj in range(4):
                lo = ACC + (r * 4 + jj) * 2
                V(f"v_cvt_pk_bf16_f32 v{160 + r * 4 + jj}, v{lo}, v{lo + 1}", [f"v{lo}", f"v{lo + 1}"], [f"v{160 + r * 4 + jj}"])
            of = (r >> 1) * 128 + (r & 1) * 16 if NSP else r * 16
            p.vstore(f"buffer_store_dwordx4 {rng('v', 160 + 4 * r, 4)}, v253, s[24:27], 0 offen offset:{of}",
                     R("v", 160 + 4 * r, 4) + ["v253"] + R("s", 24, 4))
    p.waitall()
    O("s_branch L_f_loop")
    p.label("L_k1_fin")
    stamp(p, 7)


def gen_k1():
    p = Prog()
    S = p.salu
    V = p.valu
    g = G()
    q = g.p
    S("s_cmp_ge_u32 s2, 256", ["s2"], ["scc"])
    S("s_cbranch_scc1 L_k1_end", ["scc"])
    if "map0" in FLAGS:
        S("s_and_b32 s46, s2, 7", ["s2"], ["s46"])
        S("s_lshr_b32 s47, s2, 3", ["s2"], ["s47"])
        S("s_and_b32 s48, s47, 15", ["s47"], ["s48"])
        S("s_lshr_b32 s49, s47, 4", ["s47"], ["s49"])
    else:
        S("s_and_b32 s46, s2, 3", ["s2"], ["s46"])
        S("s_lshl_b32 s46, s46, 1", ["s46"], ["s46"])
        S("s_lshr_b32 s3, s2, 7", ["s2"], ["s3"])
        S("s_add_u32 s46, s46, s3", ["s46", "s3"], ["s46"])
        S("s_bfe_u32 s48, s2, 0x40003", ["s2"], ["s48"])
        S("s_bfe_u32 s49, s2, 0x10002", ["s2"], ["s49"])
        S("s_lshl_b32 s47, s49, 4", ["s49"], ["s47"])
        S("s_add_u32 s47, s47, s48", ["s47", "s48"], ["s47"])
    S("s_mul_i32 s3, s49, 40", ["s49"], ["s3"])
    S("s_add_u32 s4, s0, s3", ["s0", "s3"], ["s4"])
    S("s_addc_u32 s5, s1, 0", ["s1"], ["s5"])
    p.other("s_load_dwordx8 s[8:15], s[4:5], 0")
    p.other("s_load_dwordx2 s[18:19], s[4:5], 32")
    p.other("s_load_dwordx2 s[16:17], s[0:1], 96")
    if FUSE:
        p.other("s_load_dwordx4 s[76:79], s[0:1], 80")
        p.other("s_memrealtime s[6:7]")
    V("v_lshrrev_b32 v254, 6, v0", ["v0"], ["v254"])
    V("v_and_b32 v255, 63, v0", ["v0"], ["v255"])
    V("v_readfirstlane_b32 s44, v254", ["v254"], ["s44"])
    S("s_lshl_b32 s45, s46, 2", ["s46"], ["s45"])
    S("s_add_u32 s45, s45, s44", ["s45", "s44"], ["s45"])
    for s_ in range(1, 8):
        S(f"s_mov_b32 s{50 + s_}, {s_ * 8192}", [], [f"s{50 + s_}"])
    for kt in range(1, 6):
        S(f"s_mov_b32 s{58 + kt}, {kt * 4096}", [], [f"s{58 + kt}"])
    cexp = (128.0 ** -0.5) * math.log2(math.e)
    S(f"s_mov_b32 s64, {f32bits(cexp):#x}", [], ["s64"])
    S("s_mov_b32 s65, 0x05040100", [], ["s65"])
    S("s_mov_b32 s66, 0x07060302", [], ["s66"])
    S("s_lshl_b32 s67, s44, 11", ["s44"], ["s67"])

    def sR(s_):
        return "0" if s_ == 0 else f"s{50 + s_}"

    def sK(kt):
        return "0" if kt == 0 else f"s{58 + kt}"

    L = "v255"
    V(f"v_lshrrev_b32 v248, 4, {L}", [L], ["v248"])
    V(f"v_and_b32 v249, 15, {L}", [L], ["v249"])
    V("v_and_b32 v250, 3, v249", ["v249"], ["v250"])
    V("v_lshrrev_b32 v251, 2, v249", ["v249"], ["v251"])
    V("v_lshl_add_u32 v250, v250, 2, v251", ["v250", "v251"], ["v250"])
    V("v_lshlrev_b32 v250, 4, v250", ["v250"], ["v250"])
    vW, vK, vV = "v224", "v225", "v226"
    vXd = ["v227", "v228"]
    vXr = [["v229", "v230"], ["v231", "v232"]]
    vWo, vOw, vOr, vSt = "v252", "v253", "v254", "v253"
    V(f"v_lshl_add_u32 {vW}, v248, 16, v250", ["v248", "v250"], [vW])
    V(f"v_lshl_add_u32 {vV}, v248, 10, v250", ["v248", "v250"], [vV])
    V("v_lshlrev_b32 v251, 4, v248", ["v248"], ["v251"])
    V(f"v_lshl_add_u32 {vK}, v249, 8, v251", ["v249", "v251"], [vK])
    S("s_lshl_b32 s3, s44, 1", ["s44"], ["s3"])
    for c in range(2):
        S(f"s_add_u32 s70, s3, {c}", ["s3"], ["s70"])
        V(f"v_xor_b32 v251, s70, {L}", ["s70", L], ["v251"])
        V("v_lshlrev_b32 v251, 4, v251", ["v251"], ["v251"])
        V(f"v_add_u32 {vXd[c]}, s67, v251", ["s67", "v251"], [vXd[c]])
    p.other("s_waitcnt lgkmcnt(0)")
    if FUSE:
        S("s_cmp_eq_u32 s44, 0", ["s44"], ["scc"])
        S("s_cselect_b32 s4, 1, 0", ["scc"], ["s4"])
        S("s_mov_b32 s5, 0", [], ["s5"])
    S("s_mul_i32 s3, s48, 98304", ["s48"], ["s3"])
    S("s_add_u32 s20, s8, s3", ["s8", "s3"], ["s20"])
    S("s_addc_u32 s21, s9, 0", ["s9"], ["s21"])
    S("s_mov_b32 s22, 98304", [], ["s22"])
    S("s_mov_b32 s23, 0x20000", [], ["s23"])
    S("s_lshl_b32 s3, s45, 8", ["s45"], ["s3"])
    S("s_add_u32 s96, s14, s3", ["s14", "s3"], ["s96"])
    S("s_addc_u32 s97, s15, 0", ["s15"], ["s97"])
    if "norot" in FLAGS:
        S("s_mov_b32 s98, 0", [], ["s98"])
        S("s_mov_b32 s101, 0", [], ["s101"])
    else:
        S("s_and_b32 s98, s48, 7", ["s48"], ["s98"])
        S("s_lshl_b32 s98, s98, 1", ["s98"], ["s98"])
        S("s_mov_b32 s101, s48", ["s48"], ["s101"])
    S("s_lshr_b32 s50, s98, 1", ["s98"], ["s50"])
    S("s_mov_b32 s58, s101", ["s101"], ["s58"])
    S("s_mov_b32 s26, 262144", [], ["s26"])
    S("s_mov_b32 s27, 0x20000", [], ["s27"])

    RING = [0, 32, 64, 96]
    BF = 128
    T = 176
    KV = 192

    def w_loads(dst, first):
        out = []
        q.salu("s_lshl_b32 s71, s98, 18", ["s98"], ["s71"])
        q.salu("s_add_u32 s24, s96, s71", ["s96", "s71"], ["s24"])
        q.salu("s_addc_u32 s25, s97, 0", ["s97"], ["s25"])
        q.salu("s_add_u32 s98, s98, 1", ["s98"], ["s98"])
        q.salu("s_and_b32 s98, s98, 15", ["s98"], ["s98"])
        for s_ in range(8):
            so = sR(s_)
            q.vload(f"buffer_load_dwordx4 {rng('v', dst + 4 * s_, 4)}, {vW}, s[24:27], {so} offen{NTW}",
                    [vW] + R("s", 24, 4) + ([so] if s_ else []), R("v", dst + 4 * s_, 4))
            out.append(g.take())
        return out

    def kfrag(kt, r):
        n = kt * 4 + r
        return ("a", 192 + 4 * n) if n < 16 else ("v", KV + 4 * (n - 16))

    stamp(p, 0)
    S("s_lshl_b32 s68, s44, 14", ["s44"], ["s68"])
    S("s_add_u32 s68, s68, 98304", ["s68"], ["s68"])
    S("s_lshl_b32 s69, s48, 5", ["s48"], ["s69"])
    S("s_lshl_b32 s3, s44, 3", ["s44"], ["s3"])
    S("s_add_u32 s69, s69, s3", ["s69", "s3"], ["s69"])
    S("s_lshl_b32 s3, s69, 13", ["s69"], ["s3"])
    S("s_lshl_b32 s70, s46, 10", ["s46"], ["s70"])
    S("s_add_u32 s3, s3, s70", ["s3", "s70"], ["s3"])
    S("s_add_u32 s72, s14, s3", ["s14", "s3"], ["s72"])
    S("s_addc_u32 s73, s15, 0", ["s15"], ["s73"])
    S("s_mov_b32 s74, 65536", [], ["s74"])
    S("s_mov_b32 s75, 0x20000", [], ["s75"])
    S("s_mov_b32 m0, s68", ["s68"], ["m0"])

    V(f"v_lshlrev_b32 {vOr}, 4, {L}", [L], [vOr])
    if "notouch" not in FLAGS:
        for r in range(8):
            so = sR(r)
            p.dma(f"buffer_load_dwordx4 {vOr}, s[72:75], {so} offen lds", [vOr] + R("s", 72, 4) + ([so] if r else []))
    for it in w_loads(RING[0], True):
        p.ins.extend(it)
    if "st1" in FLAGS:
        stamp(p, 1)
    for m in range(12):
        for c in range(2):
            off = (8 * m + c) * 1024
            S(f"s_add_u32 m0, s67, {off}", ["s67"], ["m0"])
            S(f"s_mov_b32 s70, {off}", [], ["s70"])
            p.dma(f"buffer_load_dwordx4 {vXd[c]}, s[20:23], s70 offen{NTX} lds", [vXd[c], "s70"] + R("s", 20, 4), tag="x")
    if "st1" in FLAGS:
        stamp(p, 2)
    if "oldstart" in FLAGS:
        for st in range(1, 4):
            for it in w_loads(RING[st], False):
                p.ins.extend(it)
            if "st1" in FLAGS:
                stamp(p, 2 + st)
    S("s_lshl_b32 s3, s48, 5", ["s48"], ["s3"])
    S("s_add_u32 s3, s3, s45", ["s3", "s45"], ["s3"])
    S("s_mul_i32 s3, s3, 24576", ["s3"], ["s3"])
    S("s_add_u32 s28, s10, s3", ["s10", "s3"], ["s28"])
    S("s_addc_u32 s29, s11, 0", ["s11"], ["s29"])
    S("s_mov_b32 s30, 24576", [], ["s30"])
    S("s_mov_b32 s31, 0x20000", [], ["s31"])
    S("s_add_u32 s32, s12, s3", ["s12", "s3"], ["s32"])
    S("s_addc_u32 s33, s13, 0", ["s13"], ["s33"])
    S("s_mov_b32 s34, 24576", [], ["s34"])
    S("s_mov_b32 s35, 0x20000", [], ["s35"])
    S("s_lshl_b32 s3, s47, 3", ["s47"], ["s3"])
    S("s_add_u32 s3, s3, s46", ["s3", "s46"], ["s3"])
    S("s_mul_i32 s3, s3, 98304", ["s3"], ["s3"])
    S("s_add_u32 s36, s16, s3", ["s16", "s3"], ["s36"])
    S("s_addc_u32 s37, s17, 0", ["s17"], ["s37"])
    S("s_mov_b32 s38, 98304", [], ["s38"])
    S("s_mov_b32 s39, 0x20000", [], ["s39"])
    S("s_lshl_b32 s3, s46, 19", ["s46"], ["s3"])
    S("s_add_u32 s99, s18, s3", ["s18", "s3"], ["s99"])
    S("s_addc_u32 s100, s19, 0", ["s19"], ["s100"])
    S(f"s_mov_b32 s42, {65536 if NSP else 32768}", [], ["s42"])
    S("s_mov_b32 s43, 0x20000", [], ["s43"])
    V("v_and_b32 v250, 7, v249", ["v249"], ["v250"])
    V("v_lshlrev_b32 v251, 10, v249", ["v249"], ["v251"])
    for par in range(2):
        V(f"v_add_u32 v246, {4 * par}, v248", ["v248"], ["v246"])
        V("v_xor_b32 v246, v246, v250", ["v246", "v250"], ["v246"])
        V(f"v_lshl_add_u32 {vXr[par][0]}, v246, 4, v251", ["v246", "v251"], [vXr[par][0]])
        V(f"v_add_u32 {vXr[par][1]}, 49152, {vXr[par][0]}", [vXr[par][0]], [vXr[par][1]])
    S("s_mul_i32 s3, s44, 24576", ["s44"], ["s3"])
    V(f"v_lshlrev_b32 {vOr}, 4, {L}", [L], [vOr])
    V(f"v_add_u32 {vOw}, s3, {vOr}", ["s3", vOr], [vOw])
    S("s_lshl_b32 s3, s44, 8", ["s44"], ["s3"])
    V("v_lshlrev_b32 v251, 4, v249", ["v249"], ["v251"])
    if NSP:
        V("v_and_b32 v251, 7, v249", ["v249"], ["v251"])
        V("v_lshlrev_b32 v251, 4, v251", ["v251"], ["v251"])
        V("v_lshrrev_b32 v246, 3, v249", ["v249"], ["v246"])
        V("v_lshl_add_u32 v251, v246, 15, v251", ["v246", "v251"], ["v251"])
    V(f"v_lshl_add_u32 {vWo}, v248, 13, v251", ["v248", "v251"], [vWo])
    V(f"v_add_u32 {vWo}, s3, {vWo}", ["s3", vWo], [vWo])

    def acc(j, qt):
        return ("a", (qt * 8 + j) * 4)

    def perms(raw, m, tdst):
        out = []
        for hi in range(2):
            for pp in range(4):
                a = raw + 4 * (2 * pp) + m
                b = raw + 4 * (2 * pp + 1) + m
                d = tdst + 4 * hi + pp
                sel = "s66" if hi else "s65"
                q.valu(f"v_perm_b32 v{d}, v{b}, v{a}, {sel}", [f"v{a}", f"v{b}", sel], [f"v{d}"])
                out.append(g.take())
        return out

    def x_reads(step, bf):
        out = []
        q.salu(f"s_add_u32 s71, s50, {step >> 1}", ["s50"], ["s71"])
        q.salu("s_and_b32 s71, s71, 7", ["s71"], ["s71"])
        q.salu("s_lshl_b32 s71, s71, 7", ["s71"], ["s71"])
        for hf in range(2):
            q.valu(f"v_add_u32 v{233 + hf}, s71, {vXr[step & 1][hf]}", ["s71", vXr[step & 1][hf]], [f"v{233 + hf}"])
        out.append(g.take())
        for qt in range(6):
            ar = f"v{233 + qt // 3}"
            d = bf + 4 * qt
            q.dsr(f"ds_read_b128 {rng('v', d, 4)}, {ar} offset:{(qt % 3) * 16384}",
                  [ar], R("v", d, 4))
            out.append(g.take())
        return out

    def gemm(ring, bfb, tb, b_reads, next_loads, pre_done=False, stamps=None, extra=None):
        if not pre_done:
            for it in b_reads(0, bfb):
                p.ins.extend(it)
        for it in perms(ring[0], 0, tb):
            p.ins.extend(it)
        for s_ in range(16):
            bf = bfb + 24 * (s_ & 1)
            for m in range(4):
                tcur = tb + 8 * (m & 1)
                tnext = tb + 8 * ((m + 1) & 1)
                mf = []
                for qt in range(6):
                    for jj in range(2):
                        q.mfma16(acc(2 * m + jj, qt), ("v", tcur + 4 * jj), ("v", bf + 4 * qt),
                                 None if s_ == 0 else acc(2 * m + jj, qt))
                        mf.append(g.take())
                fl = []
                if m < 3:
                    fl += perms(ring[s_ % 4], m + 1, tnext)
                elif s_ + 1 < 16:
                    fl += perms(ring[(s_ + 1) % 4], 0, tnext)
                if m == 0 and s_ + 1 < 16:
                    fl += b_reads(s_ + 1, bfb + 24 * ((s_ + 1) & 1))
                if m == 3:
                    fl = next_loads(s_) + fl
                if extra:
                    fl = extra(s_, m) + fl
                p.ins.extend(spread(mf, fl))
            if stamps and s_ in stamps:
                stamp(p, stamps[s_])

    def v_loads(u, dst):
        out = []
        for s_ in range(8):
            so = sK(2 * u + (s_ >> 2))
            q.vload(f"buffer_load_dwordx4 {rng('v', dst + 4 * s_, 4)}, {vV}, s[32:35], {so} offen offset:{(s_ & 3) * 256}{NTKV}",
                    [vV] + R("s", 32, 4) + ([so] if so != "0" else []), R("v", dst + 4 * s_, 4))
            out.append(g.take())
        return out

    def k_loads(ns):
        out = []
        for n in ns:
            kt, r = n >> 2, n & 3
            pf, b0 = kfrag(kt, r)
            so = sK(kt)
            q.vload(f"buffer_load_dwordx4 {rng(pf, b0, 4)}, {vK}, s[28:31], {so} offen offset:{r * 64}{NTKV}",
                    [vK] + R("s", 28, 4) + ([so] if kt else []), R(pf, b0, 4))
            out.append(g.take())
        return out

    def v_dma(ns):
        out = []
        for n in ns:
            u, s_ = n >> 3, n & 7
            so = sK(2 * u + (s_ >> 2))
            q.salu(f"s_add_u32 m0, s68, {n * 1024 - (s_ & 3) * 256}", ["s68"], ["m0"])
            q.dma(f"buffer_load_dwordx4 {vV}, s[32:35], {so} offen offset:{(s_ & 3) * 256}{NTKV} lds",
                  [vV] + R("s", 32, 4) + ([so] if so != "0" else []), tag="vd")
            out.append(g.take())
        return out

    def next_a(s_):
        out = []
        if s_ + 4 < 16 and "nold" not in FLAGS:
            out += w_loads(RING[s_ % 4], False)
        if "nokv" in FLAGS:
            return out
        if "latekv" in FLAGS:
            if s_ >= 11:
                for n in range(8 * (s_ - 11), 8 * (s_ - 11) + 8):
                    out += k_loads([n]) if n < 24 else v_dma([n - 24])
        else:
            for n in range(KVN * s_, min(KVN * s_ + KVN, 40)):
                out += k_loads([n]) if n < 24 else v_dma([n - 24])
        if s_ == 14:
            out += v_loads(2, RING[2])
        return out

    def touch_q():
        out = []
        q.salu("s_lshl_b32 s3, s69, 10", ["s69"], ["s3"])
        q.salu("s_add_u32 s72, s99, s3", ["s99", "s3"], ["s72"])
        q.salu("s_addc_u32 s73, s100, 0", ["s100"], ["s73"])
        out.append(g.take())
        return out

    if "oldstart" in FLAGS:
        for it in touch_q():
            p.ins.extend(it)

    def extra_a(s_, m):
        if "oldstart" in FLAGS:
            return []
        if s_ == 0 and m < 3:
            return w_loads(RING[m + 1], False)
        if s_ == 1 and m == 1:
            return touch_q()
        return []
    if "st1" in FLAGS:
        stamp(p, 6)
        p.barrier(needs=["x"])
        stamp(p, 7)
        gemm(RING, BF, T, x_reads, next_a, extra=extra_a)
    elif "st0" in FLAGS:
        stamp(p, 1)
        p.valu("v_mov_b32 v246, v0", ["v0"], ["v246"])
        stamp(p, 2)
        p.other("s_nop 0", needs=["x"])
        stamp(p, 3)
        p.barrier(needs=["x"])
        stamp(p, 4)
        gemm(RING, BF, T, x_reads, next_a, stamps={0: 5, 1: 6, 2: 7}, extra=extra_a)
    else:
        p.barrier(needs=["x"])
        if not NSP:
            stamp(p, 1)
        gemm(RING, BF, T, x_reads, next_a, stamps=None if FUSE else {3: 2, 9: 3}, extra=extra_a)
        stamp(p, 2 if FUSE else 4)
    p.barrier()

    QF = 176
    SACC = [128, 152]
    PB = 224
    STG = 236
    TMP = 244
    VT = [RING[3], RING[0], RING[1]]
    main = []
    fill = []

    def one(gate):
        for i in g.take():
            fill.append(([i], gate))

    def conv(qt, r, dst, gate):
        for jj in range(4):
            t0, t1 = TMP + 2 * (jj & 1), TMP + 2 * (jj & 1) + 1
            a0 = acc(2 * jj, qt)[1] + r
            a1 = acc(2 * jj + 1, qt)[1] + r
            q.valu(f"v_accvgpr_read_b32 v{t0}, a{a0}", [f"a{a0}"], [f"v{t0}"])
            q.valu(f"v_accvgpr_read_b32 v{t1}, a{a1}", [f"a{a1}"], [f"v{t1}"])
            q.valu(f"v_cvt_pk_bf16_f32 v{dst + jj}, v{t0}, v{t1}", [f"v{t0}", f"v{t1}"], [f"v{dst + jj}"])
        one(gate)

    order = ["S0", "S1", "S2", "P0", "S3", "P1", "S4", "P2", "S5", "P3", "P4", "P5"]
    mstart = {nm: 24 * k for k, nm in enumerate(order)}

    def s_part_end(qt, r):
        return mstart[f"S{qt}"] + 6 * r + 5

    def m_end(nm):
        return mstart[nm] + 23

    fidx = {}

    def C(qt):
        for r in range(4):
            gate = -1 if qt == 0 else s_part_end(qt - 1, r)
            conv(qt, r, QF + 4 * r, gate)
            fidx[("C", qt, r)] = len(fill) - 1

    def M(qt):
        b = SACC[qt & 1]
        v = [f"v{b + i}" for i in range(24)]
        gate = min(m_end(f"S{qt}") + 2, 24 * 12 - 1)
        q.valu(f"v_max3_f32 v248, {v[0]}, {v[1]}, {v[2]}", v[0:3], ["v248"])
        i = 3
        while i < 24:
            j = min(i + 1, 23)
            q.valu(f"v_max3_f32 v248, v248, {v[i]}, {v[j]}", ["v248", v[i], v[j]], ["v248"])
            i += 2
        q.valu("v_mov_b32 v249, v248", ["v248"], ["v249"])
        q.perm("v_permlane32_swap_b32 v248, v249", ["v248", "v249"], ["v248", "v249"])
        q.valu("v_max_f32 v248, v248, v249", ["v248", "v249"], ["v248"])
        q.valu("v_mov_b32 v249, v248", ["v248"], ["v249"])
        q.perm("v_permlane16_swap_b32 v248, v249", ["v248", "v249"], ["v248", "v249"])
        q.valu("v_max_f32 v248, v248, v249", ["v248", "v249"], ["v248"])
        q.valu("v_mul_f32 v248, s64, v248", ["s64", "v248"], ["v248"])
        for i in range(24):
            q.valu(f"v_fma_f32 {v[i]}, {v[i]}, s64, -v248", [v[i], "s64", "v248"], [v[i]])
            q.trans(f"v_exp_f32 {v[i]}, {v[i]}", [v[i]], [v[i]])
        q.valu(f"v_add_f32 v250, {v[0]}, {v[1]}", [v[0], v[1]], ["v250"])
        q.valu(f"v_add_f32 v251, {v[2]}, {v[3]}", [v[2], v[3]], ["v251"])
        for i in range(4, 24):
            t = "v250" if i & 1 else "v251"
            q.valu(f"v_add_f32 {t}, {t}, {v[i]}", [t, v[i]], [t])
        q.valu("v_add_f32 v250, v250, v251", ["v250", "v251"], ["v250"])
        q.valu("v_mov_b32 v251, v250", ["v250"], ["v251"])
        q.perm("v_permlane32_swap_b32 v250, v251", ["v250", "v251"], ["v250", "v251"])
        q.valu("v_add_f32 v250, v250, v251", ["v250", "v251"], ["v250"])
        q.valu("v_mov_b32 v251, v250", ["v250"], ["v251"])
        q.perm("v_permlane16_swap_b32 v250, v251", ["v250", "v251"], ["v250", "v251"])
        q.valu("v_add_f32 v250, v250, v251", ["v250", "v251"], ["v250"])
        q.trans("v_rcp_f32 v250, v250", ["v250"], ["v250"])
        for i in range(24):
            q.valu(f"v_mul_f32 {v[i]}, {v[i]}, v250", [v[i], "v250"], [v[i]])
        one(gate)
        gate2 = gate if qt == 0 else max(gate, m_end(f"P{qt - 1}"))
        for pp in range(12):
            q.valu(f"v_cvt_pk_bf16_f32 v{PB + pp}, {v[2 * pp]}, {v[2 * pp + 1]}", [v[2 * pp], v[2 * pp + 1]], [f"v{PB + pp}"])
        one(gate2)
        fidx[("M", qt)] = len(fill) - 1

    def VP():
        q.valu(f"v_add_u32 v248, s68, {vOr}", ["s68", vOr], ["v248"])
        for n in range(16):
            d = RING[n >> 3] + 4 * (n & 7)
            q.dsr(f"ds_read_b128 {rng('v', d, 4)}, v248 offset:{n * 1024}", ["v248"], R("v", d, 4), needs=["vd"], tag="vr")
        one(-1)
        if "notouch" not in FLAGS:
            q.salu("s_mov_b32 m0, s68", ["s68"], ["m0"])
            for r in range(8):
                so = "s59" if r >= 4 else "0"
                q.dma(f"buffer_load_dwordx4 {vOr}, s[72:75], {so} offen offset:{(r & 3) * 1024} lds",
                      [vOr] + R("s", 72, 4) + ([so] if r >= 4 else []), needs=["vr"])
            one(-1)
        for u in range(3):
            for m in range(4):
                for it in perms(RING[u], m, VT[u] + 8 * m):
                    fill.append((it, -1))
        fidx["VP"] = len(fill) - 1

    def OC(qt):
        gate = min(m_end(f"P{qt}") + 2, 24 * 12 - 1)
        for r in range(4):
            d = STG + 4 * (r & 1)
            conv(qt, r, d, gate)
            q.dsw(f"ds_write_b128 {vOw}, {rng('v', d, 4)} offset:{(r * 6 + qt) * 1024}", [vOw] + R("v", d, 4), tag="o")
            one(gate)

    RINGC = [RING[2], KV, 128, RING[3]]
    BFC = 0
    TC = 48

    wo_idx = [0]

    def wo_loads(dst, first):
        out = []
        if NSP:
            idx = wo_idx[0]
            wo_idx[0] += 1
            q.salu(f"s_add_u32 s40, s99, {(idx & 7) * 65536 + (idx >> 3) * 128}", ["s99"], ["s40"])
            q.salu("s_addc_u32 s41, s100, 0", ["s100"], ["s41"])
        else:
            q.salu("s_lshl_b32 s71, s101, 15", ["s101"], ["s71"])
            q.salu("s_add_u32 s40, s99, s71", ["s99", "s71"], ["s40"])
            q.salu("s_addc_u32 s41, s100, 0", ["s100"], ["s41"])
            q.salu("s_add_u32 s101, s101, 1", ["s101"], ["s101"])
            q.salu("s_and_b32 s101, s101, 15", ["s101"], ["s101"])
        for s_ in range(8):
            so = "s59" if s_ >= 4 else "0"
            q.vload(f"buffer_load_dwordx4 {rng('v', dst + 4 * s_, 4)}, {vWo}, s[40:43], {so} offen offset:{(s_ & 3) * 1024}{NTW}",
                    [vWo] + R("s", 40, 4) + ([so] if s_ >= 4 else []), R("v", dst + 4 * s_, 4))
            out.append(g.take())
        return out

    def WO(k, gate):
        for it in wo_loads(RINGC[k], k == 0):
            fill.append((it, gate))

    def EPI():
        if not FUSE:
            return
        q.salu("s_mov_b32 s20, s78", ["s78"], ["s20"])
        q.salu("s_mov_b32 s21, s79", ["s79"], ["s21"])
        q.salu("s_mov_b32 s22, 256", [], ["s22"])
        q.salu("s_mov_b32 s23, 0x20000", [], ["s23"])
        q.valu(f"v_mov_b32 v{STG}, s6", ["s6"], [f"v{STG}"])
        q.valu(f"v_mov_b32 v{STG + 1}, s7", ["s7"], [f"v{STG + 1}"])
        q.valu(f"v_mov_b32 v{STG + 2}, 0", [], [f"v{STG + 2}"])
        q.valu(f"v_mov_b32 v{STG + 3}, 0", [], [f"v{STG + 3}"])
        q.salu("s_mov_b64 exec, s[4:5]", ["s4", "s5"], ["exec"])
        q.vload(f"buffer_atomic_cmpswap_x2 {rng('v', STG, 4)}, off, s[20:23], 0 sc0",
                R("v", STG, 4) + R("s", 20, 4), R("v", STG, 2))
        q.salu("s_mov_b64 exec, -1", [], ["exec"])
        fill.append((g.take(), -1))

    def EPR():
        if not FUSE:
            return
        q.valu(f"v_readfirstlane_b32 s70, v{STG}", [f"v{STG}"], ["s70"])
        q.valu(f"v_readfirstlane_b32 s71, v{STG + 1}", [f"v{STG + 1}"], ["s71"])
        q.salu("s_or_b32 s3, s70, s71", ["s70", "s71"], ["s3"])
        q.salu("s_cmp_eq_u32 s3, 0", ["s3"], ["scc"])
        q.salu("s_cselect_b32 s6, s6, s70", ["scc", "s6", "s70"], ["s6"])
        q.salu("s_cselect_b32 s7, s7, s71", ["scc", "s7", "s71"], ["s7"])
        fill.append((g.take(), -1))

    EPI(); C(0); C(1); M(0); C(2); VP(); WO(0, -1); M(1); C(3); EPR(); OC(0); M(2); C(4); OC(1); M(3); C(5)
    WO(1, m_end("S5")); OC(2); M(4); OC(3); M(5); WO(2, -1); OC(4); WO(3, m_end("P5")); OC(5)

    for nm in order:
        qt = int(nm[1])
        if nm[0] == "S":
            for r in range(4):
                gate = fidx[("C", qt, r)]
                if qt >= 2:
                    gate = max(gate, fidx[("M", qt - 2)])
                for kt in range(6):
                    d = ("v", SACC[qt & 1] + 4 * kt)
                    q.mfma16(d, kfrag(kt, r), ("v", QF + 4 * r), None if r == 0 else d)
                    main.append((g.take(), gate))
        else:
            gate = max(fidx[("M", qt)], fidx["VP"])
            for u in range(3):
                for j in range(8):
                    q.mfma16(acc(j, qt), ("v", VT[u] + 4 * j), ("v", PB + 4 * u), None if u == 0 else acc(j, qt))
                    main.append((g.take(), gate))
    p.ins.extend(gated_merge(main, fill, 5))
    if "st0" not in FLAGS:
        stamp(p, 3 if FUSE else 5)
    p.barrier(needs=["o"])


    def o_reads(step, bf):
        out = []
        q.salu(f"s_add_u32 s71, s58, {step}", ["s58"], ["s71"])
        q.salu("s_and_b32 s71, s71, 15", ["s71"], ["s71"])
        q.salu("s_mul_i32 s71, s71, 6144", ["s71"], ["s71"])
        q.valu(f"v_add_u32 v224, s71, {vOr}", ["s71", vOr], ["v224"])
        out.append(g.take())
        for qt in range(6):
            d = bf + 4 * qt
            q.dsr(f"ds_read_b128 {rng('v', d, 4)}, v224 offset:{qt * 1024}", ["v224"], R("v", d, 4))
            out.append(g.take())
        return out

    def next_c(s_):
        if s_ + 4 < 16 and "nold" not in FLAGS:
            return wo_loads(RINGC[s_ % 4], False)
        return []

    if NSP:
        FT = 160
        ET = 176

        def acc2(H, t, qt):
            return ("a", (H * 24 + qt * 4 + t) * 4)

        def o_reads2(k32, bf):
            out = []
            for qt in range(6):
                d = bf + 4 * qt
                off = k32 * 6144 + qt * 1024
                if off < 65536:
                    q.dsr(f"ds_read_b128 {rng('v', d, 4)}, {vOr} offset:{off}", [vOr], R("v", d, 4))
                else:
                    q.dsr(f"ds_read_b128 {rng('v', d, 4)}, v224 offset:{off - 65536}", ["v224"], R("v", d, 4))
                out.append(g.take())
            return out

        def prep(raw, grp, tdst):
            mu, e = grp >> 1, grp & 1
            out = []
            m = 0x00ff00ff if mu == 0 else 0xff00ff00
            q.salu(f"s_mov_b32 vcc_lo, {m:#x}", [], ["vcc"])
            q.salu(f"s_mov_b32 vcc_hi, {m:#x}", [], ["vcc"])
            for s_ in range(8):
                own = raw + 4 * s_ + e + 2 * mu
                oth = raw + 4 * s_ + e + 2 * (1 - mu)
                q.valu(f"v_cndmask_b32_dpp v{FT + s_}, v{oth}, v{own}, vcc row_ror:8 row_mask:0xf bank_mask:0xf",
                       [f"v{oth}", f"v{own}", "vcc"], [f"v{FT + s_}"])
                out.append(g.take())
                if s_ & 1:
                    pp = s_ >> 1
                    for hi in range(2):
                        d = tdst + 4 * hi + pp
                        sel = "s66" if hi else "s65"
                        q.valu(f"v_perm_b32 v{d}, v{FT + s_}, v{FT + s_ - 1}, {sel}", [f"v{FT + s_}", f"v{FT + s_ - 1}", sel], [f"v{d}"])
                        out.append(g.take())
            return out

        def epi(H):
            out = []
            k = 0
            for qt in range(6):
                for rr in range(2):
                    d = ET + 4 * (k & 1)
                    k += 1
                    for c in range(4):
                        r = 2 * rr + (c >> 1)
                        t = 2 * (c & 1)
                        t0 = ET + 8 + 2 * (c & 3)
                        a0 = acc2(H, t, qt)[1] + r
                        a1 = acc2(H, t + 1, qt)[1] + r
                        q.valu(f"v_accvgpr_read_b32 v{t0}, a{a0}", [f"a{a0}"], [f"v{t0}"])
                        out.append(g.take())
                        q.valu(f"v_accvgpr_read_b32 v{t0 + 1}, a{a1}", [f"a{a1}"], [f"v{t0 + 1}"])
                        out.append(g.take())
                        q.valu(f"v_cvt_pk_bf16_f32 v{d + c}, v{t0}, v{t0 + 1}", [f"v{t0}", f"v{t0 + 1}"], [f"v{d + c}"])
                        out.append(g.take())
                    off = H * 12288 + qt * 2048 + rr * 1024
                    so = sK(off >> 12)
                    q.vstore(f"buffer_store_dwordx4 {rng('v', d, 4)}, {vSt}, s[36:39], {so} offen offset:{off & 4095}{NTS}",
                             R("v", d, 4) + [vSt] + R("s", 36, 4) + ([so] if so != "0" else []))
                    out.append(g.take())
            return out

        V(f"v_add_u32 v224, 0x10000, {vOr}", [vOr], ["v224"])
        for it in o_reads2(0, BFC):
            p.ins.extend(it)
        for it in prep(RINGC[0], 0, TC):
            p.ins.extend(it)
        ep0 = []
        for idx in range(16):
            H = idx >> 3
            if idx == 8:
                stamp(p, 1)
            if idx == 12:
                ep0 = epi(0)
            for grp in range(4):
                mu, e = grp >> 1, grp & 1
                bf = BFC + 24 * mu
                tcur = TC + 8 * (grp & 1)
                tnext = TC + 8 * ((grp + 1) & 1)
                mf = []
                for qt in range(6):
                    for tt in range(2):
                        a_ = acc2(H, 2 * e + tt, qt)
                        q.mfma16(a_, ("v", tcur + 4 * tt), ("v", bf + 4 * qt), None if ((idx & 7) == 0 and mu == 0) else a_)
                        mf.append(g.take())
                fl = []
                if grp < 3:
                    fl += prep(RINGC[idx % 4], grp + 1, tnext)
                elif idx + 1 < 16:
                    fl += prep(RINGC[(idx + 1) % 4], 0, tnext)
                if e == 0:
                    kn = 2 * idx + mu + 1
                    if kn < 32:
                        fl += o_reads2(kn & 15, BFC + 24 * (1 - mu))
                if grp == 3:
                    fl = next_c(idx) + fl
                if ep0:
                    n = 13
                    fl += ep0[:n]
                    ep0 = ep0[n:]
                p.ins.extend(spread(mf, fl))
        assert not ep0
        if "st0" not in FLAGS:
            stamp(p, 4)
        for it in epi(1):
            p.ins.extend(it)
    else:
        gemm(RINGC, BFC, TC, o_reads, next_c)
        if "st0" not in FLAGS:
            stamp(p, 4 if FUSE else 6)
        k = 0
        for qt in range(6):
            for r in range(4):
                d = 64 + 4 * (k % 16)
                k += 1
                for jj in range(4):
                    t0 = 228 + 2 * jj
                    a0 = acc(2 * jj, qt)[1] + r
                    a1 = acc(2 * jj + 1, qt)[1] + r
                    V(f"v_accvgpr_read_b32 v{t0}, a{a0}", [f"a{a0}"], [f"v{t0}"])
                    V(f"v_accvgpr_read_b32 v{t0 + 1}, a{a1}", [f"a{a1}"], [f"v{t0 + 1}"])
                    V(f"v_cvt_pk_bf16_f32 v{d + jj}, v{t0}, v{t0 + 1}", [f"v{t0}", f"v{t0 + 1}"], [f"v{d + jj}"])
                so = sK(qt)
                p.vstore(f"buffer_store_dwordx4 {rng('v', d, 4)}, {vSt}, s[36:39], {so} offen offset:{r * 1024}{NTS}",
                         R("v", d, 4) + [vSt] + R("s", 36, 4) + ([so] if qt else []))
    if FUSE:
        fused_tail(p)
    else:
        if PROF:
            p.waitall()
        if "st0" not in FLAGS:
            stamp(p, 7)
    dump_stamps(p, 8)
    p.label("L_k1_end")
    p.other("s_endpgm")
    return p


def gen_k2():
    p = Prog()
    S = p.salu
    V = p.valu
    S("s_cmp_ge_u32 s2, 192", ["s2"], ["scc"])
    S("s_cbranch_scc1 L_k2_end", ["scc"])
    p.other("s_load_dwordx2 s[10:11], s[0:1], 80")
    p.other("s_load_dwordx2 s[16:17], s[0:1], 96")
    V("v_lshrrev_b32 v254, 6, v0", ["v0"], ["v254"])
    V("v_and_b32 v255, 63, v0", ["v0"], ["v255"])
    V("v_readfirstlane_b32 s44, v254", ["v254"], ["s44"])
    S("s_mul_i32 s3, s2, 43691", ["s2"], ["s3"])
    S("s_lshr_b32 s47, s3, 18", ["s3"], ["s47"])
    S("s_mul_i32 s3, s47, 6", ["s47"], ["s3"])
    S("s_sub_u32 s46, s2, s3", ["s2", "s3"], ["s46"])
    S("s_and_b32 s48, s47, 15", ["s47"], ["s48"])
    S("s_lshr_b32 s49, s47, 4", ["s47"], ["s49"])
    p.other("s_waitcnt lgkmcnt(0)")
    S("s_mul_i32 s3, s47, 786432", ["s47"], ["s3"])
    S("s_add_u32 s36, s16, s3", ["s16", "s3"], ["s36"])
    S("s_addc_u32 s37, s17, 0", ["s17"], ["s37"])
    S("s_mov_b32 s38, 786432", [], ["s38"])
    S("s_mov_b32 s39, 0x20000", [], ["s39"])
    S("s_mov_b32 s28, s10", ["s10"], ["s28"])
    S("s_mov_b32 s29, s11", ["s11"], ["s29"])
    S("s_mov_b32 s30, 3145728", [], ["s30"])
    S("s_mov_b32 s31, 0x20000", [], ["s31"])
    S("s_mul_i32 s50, s44, 24576", ["s44"], ["s50"])
    S("s_lshl_b32 s3, s46, 12", ["s46"], ["s3"])
    S("s_add_u32 s50, s50, s3", ["s50", "s3"], ["s50"])
    V("v_lshlrev_b32 v250, 4, v255", ["v255"], ["v250"])
    V("v_add_u32 v250, s50, v250", ["s50", "v250"], ["v250"])
    for hg in range(1, 8):
        S(f"s_mov_b32 s{51 + hg}, {hg * 98304}", [], [f"s{51 + hg}"])
    for hg in range(8):
        for r in range(4):
            d = (hg * 4 + r) * 4
            so = "0" if hg == 0 else f"s{51 + hg}"
            p.vload(f"buffer_load_dwordx4 {rng('v', d, 4)}, v250, s[36:39], {so} offen offset:{r * 1024}{NTP}",
                    ["v250"] + R("s", 36, 4) + ([so] if hg else []), R("v", d, 4))
    S("s_mul_i32 s3, s48, 96", ["s48"], ["s3"])
    S("s_lshl_b32 s50, s46, 4", ["s46"], ["s50"])
    S("s_add_u32 s3, s3, s50", ["s3", "s50"], ["s3"])
    S("s_lshl_b32 s3, s3, 11", ["s3"], ["s3"])
    S("s_lshl_b32 s50, s49, 10", ["s49"], ["s50"])
    S("s_add_u32 s3, s3, s50", ["s3", "s50"], ["s3"])
    S("s_lshl_b32 s50, s44, 8", ["s44"], ["s50"])
    S("s_add_u32 s3, s3, s50", ["s3", "s50"], ["s3"])
    V("v_and_b32 v251, 15, v255", ["v255"], ["v251"])
    V("v_lshrrev_b32 v252, 4, v255", ["v255"], ["v252"])
    V("v_lshlrev_b32 v252, 6, v252", ["v252"], ["v252"])
    V("v_lshl_add_u32 v251, v251, 11, v252", ["v251", "v252"], ["v251"])
    V("v_add_u32 v251, s3, v251", ["s3", "v251"], ["v251"])
    S("s_mov_b32 s60, 0xffff0000", [], ["s60"])
    ACC = 128
    for hg in range(8):
        for r in range(4):
            for jj in range(4):
                s_ = (hg * 4 + r) * 4 + jj
                lo = ACC + (r * 4 + jj) * 2
                if hg == 0:
                    V(f"v_lshlrev_b32 v{lo}, 16, v{s_}", [f"v{s_}"], [f"v{lo}"])
                    V(f"v_and_b32 v{lo + 1}, s60, v{s_}", ["s60", f"v{s_}"], [f"v{lo + 1}"])
                else:
                    V(f"v_lshlrev_b32 v248, 16, v{s_}", [f"v{s_}"], ["v248"])
                    V(f"v_and_b32 v249, s60, v{s_}", ["s60", f"v{s_}"], ["v249"])
                    V(f"v_add_f32 v{lo}, v{lo}, v248", [f"v{lo}", "v248"], [f"v{lo}"])
                    V(f"v_add_f32 v{lo + 1}, v{lo + 1}, v249", [f"v{lo + 1}", "v249"], [f"v{lo + 1}"])
    for r in range(4):
        for jj in range(4):
            lo = ACC + (r * 4 + jj) * 2
            V(f"v_cvt_pk_bf16_f32 v{160 + r * 4 + jj}, v{lo}, v{lo + 1}", [f"v{lo}", f"v{lo + 1}"], [f"v{160 + r * 4 + jj}"])
        p.vstore(f"buffer_store_dwordx4 {rng('v', 160 + 4 * r, 4)}, v251, s[28:31], 0 offen offset:{r * 16}",
                 R("v", 160 + 4 * r, 4) + ["v251"] + R("s", 28, 4))
    p.label("L_k2_end")
    p.other("s_endpgm")
    return p


HEADER = """; Two-kernel implementation (generated by a hand-written python generator).
; @launch kernel=k1_kernel grid=(256,1,1) block=(256,1,1) lds=163840
; @launch kernel=k2_kernel grid=(192,1,1) block=(256,1,1) lds=0
.amdgcn_target "amdgcn-amd-amdhsa--gfx950"
.text
"""


HEADER1 = """; Single fused kernel (generated by a hand-written python generator).
; @launch grid=(256,1,1) block=(256,1,1) lds=163840
.amdgcn_target "amdgcn-amd-amdhsa--gfx950"
.text
"""


def kd(name, nvgpr, accum):
    return f""".amdhsa_kernel {name}
  .amdhsa_next_free_vgpr {nvgpr}
  .amdhsa_next_free_sgpr 102
  .amdhsa_accum_offset {accum}
  .amdhsa_group_segment_fixed_size 0
  .amdhsa_kernarg_size 104
  .amdhsa_user_sgpr_count 2
  .amdhsa_user_sgpr_kernarg_segment_ptr 1
  .amdhsa_system_sgpr_workgroup_id_x 1
.end_amdhsa_kernel
"""


def main():
    t1, i1 = finalize(gen_k1())
    t2, i2 = finalize(gen_k2())
    if FUSE:
        s = HEADER1
        name = NAME + "_kernel"
        s += f".globl {name}\n.p2align 8\n.type {name},@function\n{name}:\n{t1}"
        s += '.section .rodata,"a"\n.p2align 6\n'
        s += kd(name, 512, 256)
    else:
        s = HEADER
        for name, t in (("k1_kernel", t1), ("k2_kernel", t2)):
            s += f".globl {name}\n.p2align 8\n.type {name},@function\n{name}:\n{t}"
        s += '.section .rodata,"a"\n.p2align 6\n'
        s += kd("k1_kernel", 512, 256)
        s += ".p2align 6\n"
        s += kd("k2_kernel", 256, 256)
    open(OUT, "w").write(s)
    print("k1 instrs", len(i1), "k2 instrs", len(i2))


if __name__ == "__main__":
    main()
```

```python
import math
import struct
import sys

sys.path.insert(0, "work")
from asmgen import *

NAME = "concat_heads__gqa_block_cached__gqa_block_cached__near_ridge"
OUT = f"cdna_kernels/{NAME}.s"
PROF = len(sys.argv) > 1 and sys.argv[1] == "prof"
FLAGS = set(sys.argv[2:])
if PROF:
    OUT = "prof%s.s" % "".join(sys.argv[2:])
if len(sys.argv) > 1 and sys.argv[1] == "var":
    OUT = "var%s.s" % "".join(sys.argv[2:])


KVN = 3
for f_ in FLAGS:
    if f_.startswith("kv"):
        KVN = int(f_[2:])


NTKV = " nt" if "kvnt" in FLAGS else ""
NTX = " nt" if "ntx" in FLAGS else ""
NTW = " nt" if "ntw" in FLAGS else ""
NTS = " nt" if "nts" in FLAGS else ""
if "scs" in FLAGS:
    NTS = " sc1"
if "scs2" in FLAGS:
    NTS = " sc0 sc1"
NTP = " nt" if "ntp" in FLAGS else ""


NSP = "nsp" in FLAGS
FUSE = "fuse" in FLAGS or NSP
if FUSE and not NTS:
    NTS = " sc1"


def f32bits(x):
    return struct.unpack("<I", struct.pack("<f", x))[0]


def stamp(p, idx):
    if PROF:
        p.other(f"s_memtime s[{80 + 2 * idx}:{81 + 2 * idx}]")
        p.other("s_waitcnt lgkmcnt(0)")


def dump_stamps(p, n, wgs=(0, 9, 100, 255)):
    if not PROF:
        return
    p.other("s_load_dwordx2 s[76:77], s[0:1], 88")
    p.other("s_waitcnt lgkmcnt(0)")
    p.salu("s_mov_b32 s78, 256", [], ["s78"])
    p.salu("s_mov_b32 s79, 0x20000", [], ["s79"])
    p.salu("s_cmp_lg_u32 s44, 0", ["s44"], ["scc"])
    lab = f"L_nost_{id(p)}"
    p.salu(f"s_cbranch_scc1 {lab}", ["scc"])
    HP = "hp" in FLAGS
    if HP:
        wgs = (0, 255)
    for k, wg in enumerate(wgs):
        l2 = f"L_st_{id(p)}_{k}"
        p.salu(f"s_cmp_lg_u32 s2, {wg}", ["s2"], ["scc"])
        p.salu(f"s_cbranch_scc1 {l2}", ["scc"])
        for i in range(1 if HP else 0, n):
            p.salu(f"s_sub_u32 s3, s{80 + 2 * i}, s80", [f"s{80 + 2 * i}", "s80"], ["s3"])
            p.valu("v_mov_b32 v250, s3", ["s3"], ["v250"])
            p.valu(f"v_mov_b32 v251, {(k * 7 + i + 1) * 4 if HP else (k * 8 + i) * 4 + 128}", [], ["v251"])
            p.vstore("buffer_store_dword v250, v251, s[76:79], 0 offen", ["v250", "v251"] + R("s", 76, 4))
            p.waitall()
        p.label(l2)
    p.label(lab)


class G:
    def __init__(self):
        self.p = Prog()

    def take(self):
        r = self.p.ins
        self.p.ins = []
        return r


def gated_merge(main, fill, ratio):
    out = []
    mi = fi = 0
    while mi < len(main) or fi < len(fill):
        progressed = False
        if mi < len(main) and main[mi][1] < fi:
            out.extend(main[mi][0])
            mi += 1
            progressed = True
            k = 0
            while k < ratio and fi < len(fill) and fill[fi][1] < mi:
                out.extend(fill[fi][0])
                fi += 1
                k += 1
        else:
            if fi < len(fill) and fill[fi][1] < mi:
                out.extend(fill[fi][0])
                fi += 1
                progressed = True
        assert progressed, (mi, fi)
    return out


def spread(mf, fl):
    out = []
    n, m = len(mf), len(fl)
    k = 0
    for i, x in enumerate(mf):
        out.extend(x)
        tgt = ((i + 1) * m + n - 1) // n
        while k < min(tgt, m):
            out.extend(fl[k])
            k += 1
    return out


def fused_tail(p):
    S = p.salu
    V = p.valu
    O = p.other
    S("s_add_u32 s20, s16, 0x2000000", ["s16"], ["s20"])
    S("s_addc_u32 s21, s17, 0", ["s17"], ["s21"])
    S("s_mov_b32 s22, 4096", [], ["s22"])
    S("s_mov_b32 s23, 0x20000", [], ["s23"])
    S("s_mov_b32 s24, s76", ["s76"], ["s24"])
    S("s_mov_b32 s25, s77", ["s77"], ["s25"])
    S("s_mov_b32 s26, 3145728", [], ["s26"])
    S("s_mov_b32 s27, 0x20000", [], ["s27"])
    S("s_mul_i32 s3, s47, 786432", ["s47"], ["s3"])
    S("s_add_u32 s28, s16, s3", ["s16", "s3"], ["s28"])
    S("s_addc_u32 s29, s17, 0", ["s17"], ["s29"])
    S("s_mov_b32 s30, 786432", [], ["s30"])
    S("s_mov_b32 s31, 0x20000", [], ["s31"])
    for hg in range(1, 8):
        S(f"s_mov_b32 s{50 + hg}, {hg * 98304}", [], [f"s{50 + hg}"])
    S("s_mov_b32 s60, 0xffff0000", [], ["s60"])
    S("s_lshl_b32 s71, s47, 7", ["s47"], ["s71"])
    S("s_lshl_b32 s70, s46, 3", ["s46"], ["s70"])
    S("s_add_u32 s70, s70, s71", ["s70", "s71"], ["s70"])
    S("s_lshl_b32 s72, 1, s46", ["s46"], ["s72"])
    S("s_mul_i32 s61, s48, 196608", ["s48"], ["s61"])
    S("s_lshl_b32 s3, s49, 10", ["s49"], ["s3"])
    S("s_add_u32 s61, s61, s3", ["s61", "s3"], ["s61"])
    V("v_lshlrev_b32 v250, 4, v255", ["v255"], ["v250"])
    V("v_and_b32 v251, 15, v255", ["v255"], ["v251"])
    V("v_lshrrev_b32 v252, 4, v255", ["v255"], ["v252"])
    if NSP:
        V("v_and_b32 v246, 1, v252", ["v252"], ["v246"])
        V("v_lshrrev_b32 v252, 1, v252", ["v252"], ["v252"])
        V("v_lshlrev_b32 v252, 5, v252", ["v252"], ["v252"])
        V("v_lshl_add_u32 v252, v246, 6, v252", ["v246", "v252"], ["v252"])
    else:
        V("v_lshlrev_b32 v252, 6, v252", ["v252"], ["v252"])
    V("v_lshl_add_u32 v251, v251, 11, v252", ["v251", "v252"], ["v251"])
    V("v_lshl_add_u32 v249, v255, 3, s71", ["s71", "v255"], ["v249"])
    V("v_mov_b32 v248, s70", ["s70"], ["v248"])
    V("v_mov_b32 v247, 0", [], ["v247"])
    p.waitall()
    stamp(p, 5)
    p.barrier()
    O("s_cmp_lg_u32 s44, 0")
    O("s_cbranch_scc1 L_f_wait")
    O("s_mov_b64 exec, 1")
    O("v_mov_b32 v244, s6")
    O("v_mov_b32 v245, s7")
    O("s_nop 1")
    O("buffer_store_dwordx2 v[244:245], v248, s[20:23], 0 offen sc1")
    O("s_mov_b64 exec, 0xff")
    O("s_mov_b32 s73, 400")
    p.label("L_f_spin")
    O("buffer_load_dwordx2 v[240:241], v249, s[20:23], 0 offen sc1")
    O("s_waitcnt vmcnt(0)")
    O("v_and_b32 v242, 0x7fffffff, v241")
    O("v_cmp_eq_u32 vcc, s6, v240")
    O("v_cmp_eq_u32 s[70:71], s7, v242")
    O("s_nop 3")
    O("s_and_b32 s70, s70, vcc_lo")
    O("s_cmp_eq_u32 s70, 0xff")
    O("s_cbranch_scc1 L_f_all")
    O("s_sleep 1")
    O("s_sub_u32 s73, s73, 1")
    O("s_cmp_lg_u32 s73, 0")
    O("s_cbranch_scc1 L_f_spin")
    O("s_mov_b64 exec, 1")
    O("v_or_b32 v245, 0x80000000, v245")
    O("s_nop 1")
    O("buffer_store_dwordx2 v[244:245], v248, s[20:23], 0 offen sc1")
    O("s_waitcnt vmcnt(0)")
    O("s_mov_b64 exec, 0xff")
    O("buffer_load_dwordx2 v[240:241], v249, s[20:23], 0 offen sc1")
    O("s_waitcnt vmcnt(0)")
    O("v_and_b32 v242, 0x7fffffff, v241")
    O("v_cmp_eq_u32 vcc, s6, v240")
    O("v_cmp_eq_u32 s[70:71], s7, v242")
    O("s_nop 3")
    O("s_and_b32 s70, s70, vcc_lo")
    O("s_cmp_eq_u32 s70, 0xff")
    O("s_cbranch_scc1 L_f_all")
    O("s_mov_b32 s72, 0")
    O("s_branch L_f_pub")
    p.label("L_f_all")
    O("v_cmp_gt_i32 vcc, 0, v241")
    O("s_nop 3")
    O("s_or_b32 s72, s72, vcc_lo")
    p.label("L_f_pub")
    O("s_mov_b64 exec, 1")
    O("v_mov_b32 v248, s72")
    O("s_nop 1")
    O("ds_write_b32 v247, v248")
    O("s_waitcnt lgkmcnt(0)")
    O("s_mov_b64 exec, -1")
    p.label("L_f_wait")
    p.barrier()
    O("ds_read_b32 v248, v247")
    O("s_waitcnt lgkmcnt(0)")
    O("v_readfirstlane_b32 s72, v248")
    O("s_nop 3")
    stamp(p, 6)
    O("s_cmp_ge_u32 s44, 3")
    O("s_cbranch_scc1 L_k1_fin")
    p.label("L_f_loop")
    O("s_cmp_eq_u32 s72, 0")
    O("s_cbranch_scc1 L_k1_fin")
    O("s_ff1_i32_b32 s73, s72")
    O("s_bitset0_b32 s72, s73")
    O("s_mul_i32 s73, s73, 3")
    O("s_add_u32 s73, s73, s44")
    O("s_mul_i32 s3, s73, 43")
    O("s_lshr_b32 s70, s3, 8")
    O("s_mul_i32 s3, s70, 6")
    O("s_sub_u32 s71, s73, s3")
    if NSP:
        O("s_mul_i32 s3, s70, 24576")
        O("s_lshl_b32 s74, s71, 11")
        O("s_add_u32 s3, s3, s74")
    else:
        O("s_lshl_b32 s3, s73, 12")
    S("s_lshl_b32 s74, s71, 15", ["s71"], ["s74"])
    S("s_lshl_b32 s75, s70, 8", ["s70"], ["s75"])
    S("s_add_u32 s74, s74, s75", ["s74", "s75"], ["s74"])
    S("s_add_u32 s74, s74, s61", ["s74", "s61"], ["s74"])
    V("v_add_u32 v252, s3, v250", ["s3", "v250"], ["v252"])
    V("v_add_u32 v253, s74, v251", ["s74", "v251"], ["v253"])
    V("v_add_u32 v254, 12288, v252", ["v252"], ["v254"])
    for hg in range(8):
        for r in range(4):
            d = (hg * 4 + r) * 4
            so = "0" if hg == 0 else f"s{50 + hg}"
            va = "v254" if (NSP and r >= 2) else "v252"
            of = (r & 1) * 1024 if NSP else r * 1024
            p.vload(f"buffer_load_dwordx4 {rng('v', d, 4)}, {va}, s[28:31], {so} offen offset:{of} sc1",
                    [va] + R("s", 28, 4) + ([so] if hg else []), R("v", d, 4))
    ACC = 128
    for hg in range(8):
        for r in range(4):
            for jj in range(4):
                s_ = (hg * 4 + r) * 4 + jj
                lo = ACC + (r * 4 + jj) * 2
                if hg == 0:
                    V(f"v_lshlrev_b32 v{lo}, 16, v{s_}", [f"v{s_}"], [f"v{lo}"])
                    V(f"v_and_b32 v{lo + 1}, s60, v{s_}", ["s60", f"v{s_}"], [f"v{lo + 1}"])
                else:
                    t = 244 + 2 * (jj & 1)
                    V(f"v_lshlrev_b32 v{t}, 16, v{s_}", [f"v{s_}"], [f"v{t}"])
                    V(f"v_and_b32 v{t + 1}, s60, v{s_}", ["s60", f"v{s_}"], [f"v{t + 1}"])
                    V(f"v_pk_add_f32 v[{lo}:{lo + 1}], v[{lo}:{lo + 1}], v[{t}:{t + 1}]",
                      [f"v{lo}", f"v{lo + 1}", f"v{t}", f"v{t + 1}"], [f"v{lo}", f"v{lo + 1}"])
    if NSP:
        for H in range(2):
            for rr in range(2):
                for c in range(4):
                    lo = ACC + ((H * 2 + rr) * 4 + c) * 2
                    d = 160 + (H * 2 + (c >> 1)) * 4 + rr * 2 + (c & 1)
                    V(f"v_cvt_pk_bf16_f32 v{d}, v{lo}, v{lo + 1}", [f"v{lo}", f"v{lo + 1}"], [f"v{d}"])
            for st in range(2):
                d = 160 + (H * 2 + st) * 4
                for k in range(2):
                    p.perm(f"v_permlane32_swap_b32 v{d + k}, v{d + k + 2}", [f"v{d + k}", f"v{d + k + 2}"], [f"v{d + k}", f"v{d + k + 2}"])
            for st in range(2):
                d = 160 + (H * 2 + st) * 4
                p.vstore(f"buffer_store_dwordx4 {rng('v', d, 4)}, v253, s[24:27], 0 offen offset:{H * 128 + st * 16}",
                         R("v", d, 4) + ["v253"] + R("s", 24, 4))
    else:
        for r in range(4):
            for jj in range(4):
                lo = ACC + (r * 4 + jj) * 2
                V(f"v_cvt_pk_bf16_f32 v{160 + r * 4 + jj}, v{lo}, v{lo + 1}", [f"v{lo}", f"v{lo + 1}"], [f"v{160 + r * 4 + jj}"])
            of = (r >> 1) * 128 + (r & 1) * 16 if NSP else r * 16
            p.vstore(f"buffer_store_dwordx4 {rng('v', 160 + 4 * r, 4)}, v253, s[24:27], 0 offen offset:{of}",
                     R("v", 160 + 4 * r, 4) + ["v253"] + R("s", 24, 4))
    p.waitall()
    O("s_branch L_f_loop")
    p.label("L_k1_fin")
    stamp(p, 7)


def gen_k1():
    p = Prog()
    S = p.salu
    V = p.valu
    g = G()
    q = g.p
    S("s_cmp_ge_u32 s2, 256", ["s2"], ["scc"])
    S("s_cbranch_scc1 L_k1_end", ["scc"])
    if "map0" in FLAGS:
        S("s_and_b32 s46, s2, 7", ["s2"], ["s46"])
        S("s_lshr_b32 s47, s2, 3", ["s2"], ["s47"])
        S("s_and_b32 s48, s47, 15", ["s47"], ["s48"])
        S("s_lshr_b32 s49, s47, 4", ["s47"], ["s49"])
    else:
        S("s_and_b32 s46, s2, 3", ["s2"], ["s46"])
        S("s_lshl_b32 s46, s46, 1", ["s46"], ["s46"])
        S("s_lshr_b32 s3, s2, 7", ["s2"], ["s3"])
        S("s_add_u32 s46, s46, s3", ["s46", "s3"], ["s46"])
        S("s_bfe_u32 s48, s2, 0x40003", ["s2"], ["s48"])
        S("s_bfe_u32 s49, s2, 0x10002", ["s2"], ["s49"])
        S("s_lshl_b32 s47, s49, 4", ["s49"], ["s47"])
        S("s_add_u32 s47, s47, s48", ["s47", "s48"], ["s47"])
    S("s_mul_i32 s3, s49, 40", ["s49"], ["s3"])
    S("s_add_u32 s4, s0, s3", ["s0", "s3"], ["s4"])
    S("s_addc_u32 s5, s1, 0", ["s1"], ["s5"])
    p.other("s_load_dwordx8 s[8:15], s[4:5], 0")
    p.other("s_load_dwordx2 s[18:19], s[4:5], 32")
    p.other("s_load_dwordx2 s[16:17], s[0:1], 96")
    if FUSE:
        p.other("s_load_dwordx4 s[76:79], s[0:1], 80")
        p.other("s_memrealtime s[6:7]")
    V("v_lshrrev_b32 v254, 6, v0", ["v0"], ["v254"])
    V("v_and_b32 v255, 63, v0", ["v0"], ["v255"])
    V("v_readfirstlane_b32 s44, v254", ["v254"], ["s44"])
    S("s_lshl_b32 s45, s46, 2", ["s46"], ["s45"])
    S("s_add_u32 s45, s45, s44", ["s45", "s44"], ["s45"])
    for s_ in range(1, 8):
        S(f"s_mov_b32 s{50 + s_}, {s_ * 8192}", [], [f"s{50 + s_}"])
    for kt in range(1, 6):
        S(f"s_mov_b32 s{58 + kt}, {kt * 4096}", [], [f"s{58 + kt}"])
    cexp = (128.0 ** -0.5) * math.log2(math.e)
    S(f"s_mov_b32 s64, {f32bits(cexp):#x}", [], ["s64"])
    S("s_mov_b32 s65, 0x05040100", [], ["s65"])
    S("s_mov_b32 s66, 0x07060302", [], ["s66"])
    S("s_lshl_b32 s67, s44, 11", ["s44"], ["s67"])

    def sR(s_):
        return "0" if s_ == 0 else f"s{50 + s_}"

    def sK(kt):
        return "0" if kt == 0 else f"s{58 + kt}"

    L = "v255"
    V(f"v_lshrrev_b32 v248, 4, {L}", [L], ["v248"])
    V(f"v_and_b32 v249, 15, {L}", [L], ["v249"])
    V("v_and_b32 v250, 3, v249", ["v249"], ["v250"])
    V("v_lshrrev_b32 v251, 2, v249", ["v249"], ["v251"])
    V("v_lshl_add_u32 v250, v250, 2, v251", ["v250", "v251"], ["v250"])
    V("v_lshlrev_b32 v250, 4, v250", ["v250"], ["v250"])
    vW, vK, vV = "v224", "v225", "v226"
    vXd = ["v227", "v228"]
    vXr = [["v229", "v230"], ["v231", "v232"]]
    vWo, vOw, vOr, vSt = "v252", "v253", "v254", "v253"
    V(f"v_lshl_add_u32 {vW}, v248, 16, v250", ["v248", "v250"], [vW])
    V(f"v_lshl_add_u32 {vV}, v248, 10, v250", ["v248", "v250"], [vV])
    V("v_lshlrev_b32 v251, 4, v248", ["v248"], ["v251"])
    V(f"v_lshl_add_u32 {vK}, v249, 8, v251", ["v249", "v251"], [vK])
    S("s_lshl_b32 s3, s44, 1", ["s44"], ["s3"])
    for c in range(2):
        S(f"s_add_u32 s70, s3, {c}", ["s3"], ["s70"])
        V(f"v_xor_b32 v251, s70, {L}", ["s70", L], ["v251"])
        V("v_lshlrev_b32 v251, 4, v251", ["v251"], ["v251"])
        V(f"v_add_u32 {vXd[c]}, s67, v251", ["s67", "v251"], [vXd[c]])
    p.other("s_waitcnt lgkmcnt(0)")
    if FUSE:
        S("s_cmp_eq_u32 s44, 0", ["s44"], ["scc"])
        S("s_cselect_b32 s4, 1, 0", ["scc"], ["s4"])
        S("s_mov_b32 s5, 0", [], ["s5"])
    S("s_mul_i32 s3, s48, 98304", ["s48"], ["s3"])
    S("s_add_u32 s20, s8, s3", ["s8", "s3"], ["s20"])
    S("s_addc_u32 s21, s9, 0", ["s9"], ["s21"])
    S("s_mov_b32 s22, 98304", [], ["s22"])
    S("s_mov_b32 s23, 0x20000", [], ["s23"])
    S("s_lshl_b32 s3, s45, 8", ["s45"], ["s3"])
    S("s_add_u32 s96, s14, s3", ["s14", "s3"], ["s96"])
    S("s_addc_u32 s97, s15, 0", ["s15"], ["s97"])
    if "norot" in FLAGS:
        S("s_mov_b32 s98, 0", [], ["s98"])
        S("s_mov_b32 s101, 0", [], ["s101"])
    else:
        S("s_and_b32 s98, s48, 7", ["s48"], ["s98"])
        S("s_lshl_b32 s98, s98, 1", ["s98"], ["s98"])
        S("s_mov_b32 s101, s48", ["s48"], ["s101"])
    S("s_lshr_b32 s50, s98, 1", ["s98"], ["s50"])
    S("s_mov_b32 s58, s101", ["s101"], ["s58"])
    S("s_mov_b32 s26, 262144", [], ["s26"])
    S("s_mov_b32 s27, 0x20000", [], ["s27"])

    RING = [0, 32, 64, 96]
    BF = 128
    T = 176
    KV = 192

    def w_loads(dst, first):
        out = []
        q.salu("s_lshl_b32 s71, s98, 18", ["s98"], ["s71"])
        q.salu("s_add_u32 s24, s96, s71", ["s96", "s71"], ["s24"])
        q.salu("s_addc_u32 s25, s97, 0", ["s97"], ["s25"])
        q.salu("s_add_u32 s98, s98, 1", ["s98"], ["s98"])
        q.salu("s_and_b32 s98, s98, 15", ["s98"], ["s98"])
        for s_ in range(8):
            so = sR(s_)
            q.vload(f"buffer_load_dwordx4 {rng('v', dst + 4 * s_, 4)}, {vW}, s[24:27], {so} offen{NTW}",
                    [vW] + R("s", 24, 4) + ([so] if s_ else []), R("v", dst + 4 * s_, 4))
            out.append(g.take())
        return out

    def kfrag(kt, r):
        n = kt * 4 + r
        return ("a", 192 + 4 * n) if n < 16 else ("v", KV + 4 * (n - 16))

    stamp(p, 0)
    S("s_lshl_b32 s68, s44, 14", ["s44"], ["s68"])
    S("s_add_u32 s68, s68, 98304", ["s68"], ["s68"])
    S("s_lshl_b32 s69, s48, 5", ["s48"], ["s69"])
    S("s_lshl_b32 s3, s44, 3", ["s44"], ["s3"])
    S("s_add_u32 s69, s69, s3", ["s69", "s3"], ["s69"])
    S("s_lshl_b32 s3, s69, 13", ["s69"], ["s3"])
    S("s_lshl_b32 s70, s46, 10", ["s46"], ["s70"])
    S("s_add_u32 s3, s3, s70", ["s3", "s70"], ["s3"])
    S("s_add_u32 s72, s14, s3", ["s14", "s3"], ["s72"])
    S("s_addc_u32 s73, s15, 0", ["s15"], ["s73"])
    S("s_mov_b32 s74, 65536", [], ["s74"])
    S("s_mov_b32 s75, 0x20000", [], ["s75"])
    S("s_mov_b32 m0, s68", ["s68"], ["m0"])

    V(f"v_lshlrev_b32 {vOr}, 4, {L}", [L], [vOr])
    if "notouch" not in FLAGS:
        for r in range(8):
            so = sR(r)
            p.dma(f"buffer_load_dwordx4 {vOr}, s[72:75], {so} offen lds", [vOr] + R("s", 72, 4) + ([so] if r else []))
    for it in w_loads(RING[0], True):
        p.ins.extend(it)
    if "st1" in FLAGS:
        stamp(p, 1)
    for m in range(12):
        for c in range(2):
            off = (8 * m + c) * 1024
            S(f"s_add_u32 m0, s67, {off}", ["s67"], ["m0"])
            S(f"s_mov_b32 s70, {off}", [], ["s70"])
            p.dma(f"buffer_load_dwordx4 {vXd[c]}, s[20:23], s70 offen{NTX} lds", [vXd[c], "s70"] + R("s", 20, 4), tag="x")
    if "st1" in FLAGS:
        stamp(p, 2)
    if "oldstart" in FLAGS:
        for st in range(1, 4):
            for it in w_loads(RING[st], False):
                p.ins.extend(it)
            if "st1" in FLAGS:
                stamp(p, 2 + st)
    S("s_lshl_b32 s3, s48, 5", ["s48"], ["s3"])
    S("s_add_u32 s3, s3, s45", ["s3", "s45"], ["s3"])
    S("s_mul_i32 s3, s3, 24576", ["s3"], ["s3"])
    S("s_add_u32 s28, s10, s3", ["s10", "s3"], ["s28"])
    S("s_addc_u32 s29, s11, 0", ["s11"], ["s29"])
    S("s_mov_b32 s30, 24576", [], ["s30"])
    S("s_mov_b32 s31, 0x20000", [], ["s31"])
    S("s_add_u32 s32, s12, s3", ["s12", "s3"], ["s32"])
    S("s_addc_u32 s33, s13, 0", ["s13"], ["s33"])
    S("s_mov_b32 s34, 24576", [], ["s34"])
    S("s_mov_b32 s35, 0x20000", [], ["s35"])
    S("s_lshl_b32 s3, s47, 3", ["s47"], ["s3"])
    S("s_add_u32 s3, s3, s46", ["s3", "s46"], ["s3"])
    S("s_mul_i32 s3, s3, 98304", ["s3"], ["s3"])
    S("s_add_u32 s36, s16, s3", ["s16", "s3"], ["s36"])
    S("s_addc_u32 s37, s17, 0", ["s17"], ["s37"])
    S("s_mov_b32 s38, 98304", [], ["s38"])
    S("s_mov_b32 s39, 0x20000", [], ["s39"])
    S("s_lshl_b32 s3, s46, 19", ["s46"], ["s3"])
    S("s_add_u32 s99, s18, s3", ["s18", "s3"], ["s99"])
    S("s_addc_u32 s100, s19, 0", ["s19"], ["s100"])
    S(f"s_mov_b32 s42, {65536 if NSP else 32768}", [], ["s42"])
    S("s_mov_b32 s43, 0x20000", [], ["s43"])
    V("v_and_b32 v250, 7, v249", ["v249"], ["v250"])
    V("v_lshlrev_b32 v251, 10, v249", ["v249"], ["v251"])
    for par in range(2):
        V(f"v_add_u32 v246, {4 * par}, v248", ["v248"], ["v246"])
        V("v_xor_b32 v246, v246, v250", ["v246", "v250"], ["v246"])
        V(f"v_lshl_add_u32 {vXr[par][0]}, v246, 4, v251", ["v246", "v251"], [vXr[par][0]])
        V(f"v_add_u32 {vXr[par][1]}, 49152, {vXr[par][0]}", [vXr[par][0]], [vXr[par][1]])
    S("s_mul_i32 s3, s44, 24576", ["s44"], ["s3"])
    V(f"v_lshlrev_b32 {vOr}, 4, {L}", [L], [vOr])
    V(f"v_add_u32 {vOw}, s3, {vOr}", ["s3", vOr], [vOw])
    S("s_lshl_b32 s3, s44, 8", ["s44"], ["s3"])
    V("v_lshlrev_b32 v251, 4, v249", ["v249"], ["v251"])
    if NSP:
        V("v_and_b32 v251, 7, v249", ["v249"], ["v251"])
        V("v_lshlrev_b32 v251, 4, v251", ["v251"], ["v251"])
        V("v_lshrrev_b32 v246, 3, v249", ["v249"], ["v246"])
        V("v_lshl_add_u32 v251, v246, 15, v251", ["v246", "v251"], ["v251"])
    V(f"v_lshl_add_u32 {vWo}, v248, 13, v251", ["v248", "v251"], [vWo])
    V(f"v_add_u32 {vWo}, s3, {vWo}", ["s3", vWo], [vWo])

    def acc(j, qt):
        return ("a", (qt * 8 + j) * 4)

    def perms(raw, m, tdst):
        out = []
        for hi in range(2):
            for pp in range(4):
                a = raw + 4 * (2 * pp) + m
                b = raw + 4 * (2 * pp + 1) + m
                d = tdst + 4 * hi + pp
                sel = "s66" if hi else "s65"
                q.valu(f"v_perm_b32 v{d}, v{b}, v{a}, {sel}", [f"v{a}", f"v{b}", sel], [f"v{d}"])
                out.append(g.take())
        return out

    def x_reads(step, bf):
        out = []
        q.salu(f"s_add_u32 s71, s50, {step >> 1}", ["s50"], ["s71"])
        q.salu("s_and_b32 s71, s71, 7", ["s71"], ["s71"])
        q.salu("s_lshl_b32 s71, s71, 7", ["s71"], ["s71"])
        for hf in range(2):
            q.valu(f"v_add_u32 v{233 + hf}, s71, {vXr[step & 1][hf]}", ["s71", vXr[step & 1][hf]], [f"v{233 + hf}"])
        out.append(g.take())
        for qt in range(6):
            ar = f"v{233 + qt // 3}"
            d = bf + 4 * qt
            q.dsr(f"ds_read_b128 {rng('v', d, 4)}, {ar} offset:{(qt % 3) * 16384}",
                  [ar], R("v", d, 4))
            out.append(g.take())
        return out

    def gemm(ring, bfb, tb, b_reads, next_loads, pre_done=False, stamps=None, extra=None):
        if not pre_done:
            for it in b_reads(0, bfb):
                p.ins.extend(it)
        for it in perms(ring[0], 0, tb):
            p.ins.extend(it)
        for s_ in range(16):
            bf = bfb + 24 * (s_ & 1)
            for m in range(4):
                tcur = tb + 8 * (m & 1)
                tnext = tb + 8 * ((m + 1) & 1)
                mf = []
                for qt in range(6):
                    for jj in range(2):
                        q.mfma16(acc(2 * m + jj, qt), ("v", tcur + 4 * jj), ("v", bf + 4 * qt),
                                 None if s_ == 0 else acc(2 * m + jj, qt))
                        mf.append(g.take())
                fl = []
                if m < 3:
                    fl += perms(ring[s_ % 4], m + 1, tnext)
                elif s_ + 1 < 16:
                    fl += perms(ring[(s_ + 1) % 4], 0, tnext)
                if m == 0 and s_ + 1 < 16:
                    fl += b_reads(s_ + 1, bfb + 24 * ((s_ + 1) & 1))
                if m == 3:
                    fl = next_loads(s_) + fl
                if extra:
                    fl = extra(s_, m) + fl
                p.ins.extend(spread(mf, fl))
            if stamps and s_ in stamps:
                stamp(p, stamps[s_])

    def v_loads(u, dst):
        out = []
        for s_ in range(8):
            so = sK(2 * u + (s_ >> 2))
            q.vload(f"buffer_load_dwordx4 {rng('v', dst + 4 * s_, 4)}, {vV}, s[32:35], {so} offen offset:{(s_ & 3) * 256}{NTKV}",
                    [vV] + R("s", 32, 4) + ([so] if so != "0" else []), R("v", dst + 4 * s_, 4))
            out.append(g.take())
        return out

    def k_loads(ns):
        out = []
        for n in ns:
            kt, r = n >> 2, n & 3
            pf, b0 = kfrag(kt, r)
            so = sK(kt)
            q.vload(f"buffer_load_dwordx4 {rng(pf, b0, 4)}, {vK}, s[28:31], {so} offen offset:{r * 64}{NTKV}",
                    [vK] + R("s", 28, 4) + ([so] if kt else []), R(pf, b0, 4))
            out.append(g.take())
        return out

    def v_dma(ns):
        out = []
        for n in ns:
            u, s_ = n >> 3, n & 7
            so = sK(2 * u + (s_ >> 2))
            q.salu(f"s_add_u32 m0, s68, {n * 1024 - (s_ & 3) * 256}", ["s68"], ["m0"])
            q.dma(f"buffer_load_dwordx4 {vV}, s[32:35], {so} offen offset:{(s_ & 3) * 256}{NTKV} lds",
                  [vV] + R("s", 32, 4) + ([so] if so != "0" else []), tag="vd")
            out.append(g.take())
        return out

    def next_a(s_):
        out = []
        if s_ + 4 < 16 and "nold" not in FLAGS:
            out += w_loads(RING[s_ % 4], False)
        if "nokv" in FLAGS:
            return out
        if "latekv" in FLAGS:
            if s_ >= 11:
                for n in range(8 * (s_ - 11), 8 * (s_ - 11) + 8):
                    out += k_loads([n]) if n < 24 else v_dma([n - 24])
        else:
            for n in range(KVN * s_, min(KVN * s_ + KVN, 40)):
                out += k_loads([n]) if n < 24 else v_dma([n - 24])
        if s_ == 14:
            out += v_loads(2, RING[2])
        return out

    def touch_q():
        out = []
        q.salu("s_lshl_b32 s3, s69, 10", ["s69"], ["s3"])
        q.salu("s_add_u32 s72, s99, s3", ["s99", "s3"], ["s72"])
        q.salu("s_addc_u32 s73, s100, 0", ["s100"], ["s73"])
        out.append(g.take())
        return out

    if "oldstart" in FLAGS:
        for it in touch_q():
            p.ins.extend(it)

    def extra_a(s_, m):
        if "oldstart" in FLAGS:
            return []
        if s_ == 0 and m < 3:
            return w_loads(RING[m + 1], False)
        if s_ == 1 and m == 1:
            return touch_q()
        return []
    if "st1" in FLAGS:
        stamp(p, 6)
        p.barrier(needs=["x"])
        stamp(p, 7)
        gemm(RING, BF, T, x_reads, next_a, extra=extra_a)
    elif "st0" in FLAGS:
        stamp(p, 1)
        p.valu("v_mov_b32 v246, v0", ["v0"], ["v246"])
        stamp(p, 2)
        p.other("s_nop 0", needs=["x"])
        stamp(p, 3)
        p.barrier(needs=["x"])
        stamp(p, 4)
        gemm(RING, BF, T, x_reads, next_a, stamps={0: 5, 1: 6, 2: 7}, extra=extra_a)
    else:
        p.barrier(needs=["x"])
        if not NSP:
            stamp(p, 1)
        gemm(RING, BF, T, x_reads, next_a, stamps=None if FUSE else {3: 2, 9: 3}, extra=extra_a)
        stamp(p, 2 if FUSE else 4)
    p.barrier()

    QF = 176
    SACC = [128, 152]
    PB = 224
    STG = 236
    TMP = 244
    VT = [RING[3], RING[0], RING[1]]
    main = []
    fill = []

    def one(gate):
        for i in g.take():
            fill.append(([i], gate))

    def conv(qt, r, dst, gate):
        for jj in range(4):
            t0, t1 = TMP + 2 * (jj & 1), TMP + 2 * (jj & 1) + 1
            a0 = acc(2 * jj, qt)[1] + r
            a1 = acc(2 * jj + 1, qt)[1] + r
            q.valu(f"v_accvgpr_read_b32 v{t0}, a{a0}", [f"a{a0}"], [f"v{t0}"])
            q.valu(f"v_accvgpr_read_b32 v{t1}, a{a1}", [f"a{a1}"], [f"v{t1}"])
            q.valu(f"v_cvt_pk_bf16_f32 v{dst + jj}, v{t0}, v{t1}", [f"v{t0}", f"v{t1}"], [f"v{dst + jj}"])
        one(gate)

    order = ["S0", "S1", "S2", "P0", "S3", "P1", "S4", "P2", "S5", "P3", "P4", "P5"]
    mstart = {nm: 24 * k for k, nm in enumerate(order)}

    def s_part_end(qt, r):
        return mstart[f"S{qt}"] + 6 * r + 5

    def m_end(nm):
        return mstart[nm] + 23

    fidx = {}

    def C(qt):
        for r in range(4):
            gate = -1 if qt == 0 else s_part_end(qt - 1, r)
            conv(qt, r, QF + 4 * r, gate)
            fidx[("C", qt, r)] = len(fill) - 1

    def M(qt):
        b = SACC[qt & 1]
        v = [f"v{b + i}" for i in range(24)]
        gate = min(m_end(f"S{qt}") + 2, 24 * 12 - 1)
        q.valu(f"v_max3_f32 v248, {v[0]}, {v[1]}, {v[2]}", v[0:3], ["v248"])
        i = 3
        while i < 24:
            j = min(i + 1, 23)
            q.valu(f"v_max3_f32 v248, v248, {v[i]}, {v[j]}", ["v248", v[i], v[j]], ["v248"])
            i += 2
        q.valu("v_mov_b32 v249, v248", ["v248"], ["v249"])
        q.perm("v_permlane32_swap_b32 v248, v249", ["v248", "v249"], ["v248", "v249"])
        q.valu("v_max_f32 v248, v248, v249", ["v248", "v249"], ["v248"])
        q.valu("v_mov_b32 v249, v248", ["v248"], ["v249"])
        q.perm("v_permlane16_swap_b32 v248, v249", ["v248", "v249"], ["v248", "v249"])
        q.valu("v_max_f32 v248, v248, v249", ["v248", "v249"], ["v248"])
        q.valu("v_mul_f32 v248, s64, v248", ["s64", "v248"], ["v248"])
        for i in range(24):
            q.valu(f"v_fma_f32 {v[i]}, {v[i]}, s64, -v248", [v[i], "s64", "v248"], [v[i]])
            q.trans(f"v_exp_f32 {v[i]}, {v[i]}", [v[i]], [v[i]])
        q.valu(f"v_add_f32 v250, {v[0]}, {v[1]}", [v[0], v[1]], ["v250"])
        q.valu(f"v_add_f32 v251, {v[2]}, {v[3]}", [v[2], v[3]], ["v251"])
        for i in range(4, 24):
            t = "v250" if i & 1 else "v251"
            q.valu(f"v_add_f32 {t}, {t}, {v[i]}", [t, v[i]], [t])
        q.valu("v_add_f32 v250, v250, v251", ["v250", "v251"], ["v250"])
        q.valu("v_mov_b32 v251, v250", ["v250"], ["v251"])
        q.perm("v_permlane32_swap_b32 v250, v251", ["v250", "v251"], ["v250", "v251"])
        q.valu("v_add_f32 v250, v250, v251", ["v250", "v251"], ["v250"])
        q.valu("v_mov_b32 v251, v250", ["v250"], ["v251"])
        q.perm("v_permlane16_swap_b32 v250, v251", ["v250", "v251"], ["v250", "v251"])
        q.valu("v_add_f32 v250, v250, v251", ["v250", "v251"], ["v250"])
        q.trans("v_rcp_f32 v250, v250", ["v250"], ["v250"])
        for i in range(24):
            q.valu(f"v_mul_f32 {v[i]}, {v[i]}, v250", [v[i], "v250"], [v[i]])
        one(gate)
        gate2 = gate if qt == 0 else max(gate, m_end(f"P{qt - 1}"))
        for pp in range(12):
            q.valu(f"v_cvt_pk_bf16_f32 v{PB + pp}, {v[2 * pp]}, {v[2 * pp + 1]}", [v[2 * pp], v[2 * pp + 1]], [f"v{PB + pp}"])
        one(gate2)
        fidx[("M", qt)] = len(fill) - 1

    def VP():
        q.valu(f"v_add_u32 v248, s68, {vOr}", ["s68", vOr], ["v248"])
        for n in range(16):
            d = RING[n >> 3] + 4 * (n & 7)
            q.dsr(f"ds_read_b128 {rng('v', d, 4)}, v248 offset:{n * 1024}", ["v248"], R("v", d, 4), needs=["vd"], tag="vr")
        one(-1)
        if "notouch" not in FLAGS:
            q.salu("s_mov_b32 m0, s68", ["s68"], ["m0"])
            for r in range(8):
                so = "s59" if r >= 4 else "0"
                q.dma(f"buffer_load_dwordx4 {vOr}, s[72:75], {so} offen offset:{(r & 3) * 1024} lds",
                      [vOr] + R("s", 72, 4) + ([so] if r >= 4 else []), needs=["vr"])
            one(-1)
        for u in range(3):
            for m in range(4):
                for it in perms(RING[u], m, VT[u] + 8 * m):
                    fill.append((it, -1))
        fidx["VP"] = len(fill) - 1

    def OC(qt):
        gate = min(m_end(f"P{qt}") + 2, 24 * 12 - 1)
        for r in range(4):
            d = STG + 4 * (r & 1)
            conv(qt, r, d, gate)
            q.dsw(f"ds_write_b128 {vOw}, {rng('v', d, 4)} offset:{(r * 6 + qt) * 1024}", [vOw] + R("v", d, 4), tag="o")
            one(gate)

    RINGC = [RING[2], KV, 128, RING[3]]
    BFC = 0
    TC = 48

    wo_idx = [0]

    def wo_loads(dst, first):
        out = []
        if NSP:
            idx = wo_idx[0]
            wo_idx[0] += 1
            q.salu(f"s_add_u32 s40, s99, {(idx & 7) * 65536 + (idx >> 3) * 128}", ["s99"], ["s40"])
            q.salu("s_addc_u32 s41, s100, 0", ["s100"], ["s41"])
        else:
            q.salu("s_lshl_b32 s71, s101, 15", ["s101"], ["s71"])
            q.salu("s_add_u32 s40, s99, s71", ["s99", "s71"], ["s40"])
            q.salu("s_addc_u32 s41, s100, 0", ["s100"], ["s41"])
            q.salu("s_add_u32 s101, s101, 1", ["s101"], ["s101"])
            q.salu("s_and_b32 s101, s101, 15", ["s101"], ["s101"])
        for s_ in range(8):
            so = "s59" if s_ >= 4 else "0"
            q.vload(f"buffer_load_dwordx4 {rng('v', dst + 4 * s_, 4)}, {vWo}, s[40:43], {so} offen offset:{(s_ & 3) * 1024}{NTW}",
                    [vWo] + R("s", 40, 4) + ([so] if s_ >= 4 else []), R("v", dst + 4 * s_, 4))
            out.append(g.take())
        return out

    def WO(k, gate):
        for it in wo_loads(RINGC[k], k == 0):
            fill.append((it, gate))

    def EPI():
        if not FUSE:
            return
        q.salu("s_mov_b32 s20, s78", ["s78"], ["s20"])
        q.salu("s_mov_b32 s21, s79", ["s79"], ["s21"])
        q.salu("s_mov_b32 s22, 256", [], ["s22"])
        q.salu("s_mov_b32 s23, 0x20000", [], ["s23"])
        q.valu(f"v_mov_b32 v{STG}, s6", ["s6"], [f"v{STG}"])
        q.valu(f"v_mov_b32 v{STG + 1}, s7", ["s7"], [f"v{STG + 1}"])
        q.valu(f"v_mov_b32 v{STG + 2}, 0", [], [f"v{STG + 2}"])
        q.valu(f"v_mov_b32 v{STG + 3}, 0", [], [f"v{STG + 3}"])
        q.salu("s_mov_b64 exec, s[4:5]", ["s4", "s5"], ["exec"])
        q.vload(f"buffer_atomic_cmpswap_x2 {rng('v', STG, 4)}, off, s[20:23], 0 sc0",
                R("v", STG, 4) + R("s", 20, 4), R("v", STG, 2))
        q.salu("s_mov_b64 exec, -1", [], ["exec"])
        fill.append((g.take(), -1))

    def EPR():
        if not FUSE:
            return
        q.valu(f"v_readfirstlane_b32 s70, v{STG}", [f"v{STG}"], ["s70"])
        q.valu(f"v_readfirstlane_b32 s71, v{STG + 1}", [f"v{STG + 1}"], ["s71"])
        q.salu("s_or_b32 s3, s70, s71", ["s70", "s71"], ["s3"])
        q.salu("s_cmp_eq_u32 s3, 0", ["s3"], ["scc"])
        q.salu("s_cselect_b32 s6, s6, s70", ["scc", "s6", "s70"], ["s6"])
        q.salu("s_cselect_b32 s7, s7, s71", ["scc", "s7", "s71"], ["s7"])
        fill.append((g.take(), -1))

    EPI(); C(0); C(1); M(0); C(2); VP(); WO(0, -1); M(1); C(3); EPR(); OC(0); M(2); C(4); OC(1); M(3); C(5)
    WO(1, m_end("S5")); OC(2); M(4); OC(3); M(5); WO(2, -1); OC(4); WO(3, m_end("P5")); OC(5)

    for nm in order:
        qt = int(nm[1])
        if nm[0] == "S":
            for r in range(4):
                gate = fidx[("C", qt, r)]
                if qt >= 2:
                    gate = max(gate, fidx[("M", qt - 2)])
                for kt in range(6):
                    d = ("v", SACC[qt & 1] + 4 * kt)
                    q.mfma16(d, kfrag(kt, r), ("v", QF + 4 * r), None if r == 0 else d)
                    main.append((g.take(), gate))
        else:
            gate = max(fidx[("M", qt)], fidx["VP"])
            for u in range(3):
                for j in range(8):
                    q.mfma16(acc(j, qt), ("v", VT[u] + 4 * j), ("v", PB + 4 * u), None if u == 0 else acc(j, qt))
                    main.append((g.take(), gate))
    p.ins.extend(gated_merge(main, fill, 5))
    if "st0" not in FLAGS:
        stamp(p, 3 if FUSE else 5)
    p.barrier(needs=["o"])


    def o_reads(step, bf):
        out = []
        q.salu(f"s_add_u32 s71, s58, {step}", ["s58"], ["s71"])
        q.salu("s_and_b32 s71, s71, 15", ["s71"], ["s71"])
        q.salu("s_mul_i32 s71, s71, 6144", ["s71"], ["s71"])
        q.valu(f"v_add_u32 v224, s71, {vOr}", ["s71", vOr], ["v224"])
        out.append(g.take())
        for qt in range(6):
            d = bf + 4 * qt
            q.dsr(f"ds_read_b128 {rng('v', d, 4)}, v224 offset:{qt * 1024}", ["v224"], R("v", d, 4))
            out.append(g.take())
        return out

    def next_c(s_):
        if s_ + 4 < 16 and "nold" not in FLAGS:
            return wo_loads(RINGC[s_ % 4], False)
        return []

    if NSP:
        FT = 160
        ET = 176

        def acc2(H, t, qt):
            return ("a", (H * 24 + qt * 4 + t) * 4)

        def o_reads2(k32, bf):
            out = []
            for qt in range(6):
                d = bf + 4 * qt
                off = k32 * 6144 + qt * 1024
                if off < 65536:
                    q.dsr(f"ds_read_b128 {rng('v', d, 4)}, {vOr} offset:{off}", [vOr], R("v", d, 4))
                else:
                    q.dsr(f"ds_read_b128 {rng('v', d, 4)}, v224 offset:{off - 65536}", ["v224"], R("v", d, 4))
                out.append(g.take())
            return out

        def prep(raw, grp, tdst):
            mu, e = grp >> 1, grp & 1
            out = []
            m = 0x00ff00ff if mu == 0 else 0xff00ff00
            q.salu(f"s_mov_b32 vcc_lo, {m:#x}", [], ["vcc"])
            q.salu(f"s_mov_b32 vcc_hi, {m:#x}", [], ["vcc"])
            for s_ in range(8):
                own = raw + 4 * s_ + e + 2 * mu
                oth = raw + 4 * s_ + e + 2 * (1 - mu)
                q.valu(f"v_cndmask_b32_dpp v{FT + s_}, v{oth}, v{own}, vcc row_ror:8 row_mask:0xf bank_mask:0xf",
                       [f"v{oth}", f"v{own}", "vcc"], [f"v{FT + s_}"])
                out.append(g.take())
                if s_ & 1:
                    pp = s_ >> 1
                    for hi in range(2):
                        d = tdst + 4 * hi + pp
                        sel = "s66" if hi else "s65"
                        q.valu(f"v_perm_b32 v{d}, v{FT + s_}, v{FT + s_ - 1}, {sel}", [f"v{FT + s_}", f"v{FT + s_ - 1}", sel], [f"v{d}"])
                        out.append(g.take())
            return out

        def epi(H):
            out = []
            k = 0
            for qt in range(6):
                for rr in range(2):
                    d = ET + 4 * (k & 1)
                    k += 1
                    for c in range(4):
                        r = 2 * rr + (c >> 1)
                        t = 2 * (c & 1)
                        t0 = ET + 8 + 2 * (c & 3)
                        a0 = acc2(H, t, qt)[1] + r
                        a1 = acc2(H, t + 1, qt)[1] + r
                        q.valu(f"v_accvgpr_read_b32 v{t0}, a{a0}", [f"a{a0}"], [f"v{t0}"])
                        out.append(g.take())
                        q.valu(f"v_accvgpr_read_b32 v{t0 + 1}, a{a1}", [f"a{a1}"], [f"v{t0 + 1}"])
                        out.append(g.take())
                        q.valu(f"v_cvt_pk_bf16_f32 v{d + c}, v{t0}, v{t0 + 1}", [f"v{t0}", f"v{t0 + 1}"], [f"v{d + c}"])
                        out.append(g.take())
                    off = H * 12288 + qt * 2048 + rr * 1024
                    so = sK(off >> 12)
                    q.vstore(f"buffer_store_dwordx4 {rng('v', d, 4)}, {vSt}, s[36:39], {so} offen offset:{off & 4095}{NTS}",
                             R("v", d, 4) + [vSt] + R("s", 36, 4) + ([so] if so != "0" else []))
                    out.append(g.take())
            return out

        V(f"v_add_u32 v224, 0x10000, {vOr}", [vOr], ["v224"])
        for it in o_reads2(0, BFC):
            p.ins.extend(it)
        for it in prep(RINGC[0], 0, TC):
            p.ins.extend(it)
        ep0 = []
        for idx in range(16):
            H = idx >> 3
            if idx == 8:
                stamp(p, 1)
            if idx == 12:
                ep0 = epi(0)
            for grp in range(4):
                mu, e = grp >> 1, grp & 1
                bf = BFC + 24 * mu
                tcur = TC + 8 * (grp & 1)
                tnext = TC + 8 * ((grp + 1) & 1)
                mf = []
                for qt in range(6):
                    for tt in range(2):
                        a_ = acc2(H, 2 * e + tt, qt)
                        q.mfma16(a_, ("v", tcur + 4 * tt), ("v", bf + 4 * qt), None if ((idx & 7) == 0 and mu == 0) else a_)
                        mf.append(g.take())
                fl = []
                if grp < 3:
                    fl += prep(RINGC[idx % 4], grp + 1, tnext)
                elif idx + 1 < 16:
                    fl += prep(RINGC[(idx + 1) % 4], 0, tnext)
                if e == 0:
                    kn = 2 * idx + mu + 1
                    if kn < 32:
                        fl += o_reads2(kn & 15, BFC + 24 * (1 - mu))
                if grp == 3:
                    fl = next_c(idx) + fl
                if ep0:
                    n = 13
                    fl += ep0[:n]
                    ep0 = ep0[n:]
                p.ins.extend(spread(mf, fl))
        assert not ep0
        if "st0" not in FLAGS:
            stamp(p, 4)
        for it in epi(1):
            p.ins.extend(it)
    else:
        gemm(RINGC, BFC, TC, o_reads, next_c)
        if "st0" not in FLAGS:
            stamp(p, 4 if FUSE else 6)
        k = 0
        for qt in range(6):
            for r in range(4):
                d = 64 + 4 * (k % 16)
                k += 1
                for jj in range(4):
                    t0 = 228 + 2 * jj
                    a0 = acc(2 * jj, qt)[1] + r
                    a1 = acc(2 * jj + 1, qt)[1] + r
                    V(f"v_accvgpr_read_b32 v{t0}, a{a0}", [f"a{a0}"], [f"v{t0}"])
                    V(f"v_accvgpr_read_b32 v{t0 + 1}, a{a1}", [f"a{a1}"], [f"v{t0 + 1}"])
                    V(f"v_cvt_pk_bf16_f32 v{d + jj}, v{t0}, v{t0 + 1}", [f"v{t0}", f"v{t0 + 1}"], [f"v{d + jj}"])
                so = sK(qt)
                p.vstore(f"buffer_store_dwordx4 {rng('v', d, 4)}, {vSt}, s[36:39], {so} offen offset:{r * 1024}{NTS}",
                         R("v", d, 4) + [vSt] + R("s", 36, 4) + ([so] if qt else []))
    if FUSE:
        fused_tail(p)
    else:
        if PROF:
            p.waitall()
        if "st0" not in FLAGS:
            stamp(p, 7)
    dump_stamps(p, 8)
    p.label("L_k1_end")
    p.other("s_endpgm")
    return p


def gen_k2():
    p = Prog()
    S = p.salu
    V = p.valu
    S("s_cmp_ge_u32 s2, 192", ["s2"], ["scc"])
    S("s_cbranch_scc1 L_k2_end", ["scc"])
    p.other("s_load_dwordx2 s[10:11], s[0:1], 80")
    p.other("s_load_dwordx2 s[16:17], s[0:1], 96")
    V("v_lshrrev_b32 v254, 6, v0", ["v0"], ["v254"])
    V("v_and_b32 v255, 63, v0", ["v0"], ["v255"])
    V("v_readfirstlane_b32 s44, v254", ["v254"], ["s44"])
    S("s_mul_i32 s3, s2, 43691", ["s2"], ["s3"])
    S("s_lshr_b32 s47, s3, 18", ["s3"], ["s47"])
    S("s_mul_i32 s3, s47, 6", ["s47"], ["s3"])
    S("s_sub_u32 s46, s2, s3", ["s2", "s3"], ["s46"])
    S("s_and_b32 s48, s47, 15", ["s47"], ["s48"])
    S("s_lshr_b32 s49, s47, 4", ["s47"], ["s49"])
    p.other("s_waitcnt lgkmcnt(0)")
    S("s_mul_i32 s3, s47, 786432", ["s47"], ["s3"])
    S("s_add_u32 s36, s16, s3", ["s16", "s3"], ["s36"])
    S("s_addc_u32 s37, s17, 0", ["s17"], ["s37"])
    S("s_mov_b32 s38, 786432", [], ["s38"])
    S("s_mov_b32 s39, 0x20000", [], ["s39"])
    S("s_mov_b32 s28, s10", ["s10"], ["s28"])
    S("s_mov_b32 s29, s11", ["s11"], ["s29"])
    S("s_mov_b32 s30, 3145728", [], ["s30"])
    S("s_mov_b32 s31, 0x20000", [], ["s31"])
    S("s_mul_i32 s50, s44, 24576", ["s44"], ["s50"])
    S("s_lshl_b32 s3, s46, 12", ["s46"], ["s3"])
    S("s_add_u32 s50, s50, s3", ["s50", "s3"], ["s50"])
    V("v_lshlrev_b32 v250, 4, v255", ["v255"], ["v250"])
    V("v_add_u32 v250, s50, v250", ["s50", "v250"], ["v250"])
    for hg in range(1, 8):
        S(f"s_mov_b32 s{51 + hg}, {hg * 98304}", [], [f"s{51 + hg}"])
    for hg in range(8):
        for r in range(4):
            d = (hg * 4 + r) * 4
            so = "0" if hg == 0 else f"s{51 + hg}"
            p.vload(f"buffer_load_dwordx4 {rng('v', d, 4)}, v250, s[36:39], {so} offen offset:{r * 1024}{NTP}",
                    ["v250"] + R("s", 36, 4) + ([so] if hg else []), R("v", d, 4))
    S("s_mul_i32 s3, s48, 96", ["s48"], ["s3"])
    S("s_lshl_b32 s50, s46, 4", ["s46"], ["s50"])
    S("s_add_u32 s3, s3, s50", ["s3", "s50"], ["s3"])
    S("s_lshl_b32 s3, s3, 11", ["s3"], ["s3"])
    S("s_lshl_b32 s50, s49, 10", ["s49"], ["s50"])
    S("s_add_u32 s3, s3, s50", ["s3", "s50"], ["s3"])
    S("s_lshl_b32 s50, s44, 8", ["s44"], ["s50"])
    S("s_add_u32 s3, s3, s50", ["s3", "s50"], ["s3"])
    V("v_and_b32 v251, 15, v255", ["v255"], ["v251"])
    V("v_lshrrev_b32 v252, 4, v255", ["v255"], ["v252"])
    V("v_lshlrev_b32 v252, 6, v252", ["v252"], ["v252"])
    V("v_lshl_add_u32 v251, v251, 11, v252", ["v251", "v252"], ["v251"])
    V("v_add_u32 v251, s3, v251", ["s3", "v251"], ["v251"])
    S("s_mov_b32 s60, 0xffff0000", [], ["s60"])
    ACC = 128
    for hg in range(8):
        for r in range(4):
            for jj in range(4):
                s_ = (hg * 4 + r) * 4 + jj
                lo = ACC + (r * 4 + jj) * 2
                if hg == 0:
                    V(f"v_lshlrev_b32 v{lo}, 16, v{s_}", [f"v{s_}"], [f"v{lo}"])
                    V(f"v_and_b32 v{lo + 1}, s60, v{s_}", ["s60", f"v{s_}"], [f"v{lo + 1}"])
                else:
                    V(f"v_lshlrev_b32 v248, 16, v{s_}", [f"v{s_}"], ["v248"])
                    V(f"v_and_b32 v249, s60, v{s_}", ["s60", f"v{s_}"], ["v249"])
                    V(f"v_add_f32 v{lo}, v{lo}, v248", [f"v{lo}", "v248"], [f"v{lo}"])
                    V(f"v_add_f32 v{lo + 1}, v{lo + 1}, v249", [f"v{lo + 1}", "v249"], [f"v{lo + 1}"])
    for r in range(4):
        for jj in range(4):
            lo = ACC + (r * 4 + jj) * 2
            V(f"v_cvt_pk_bf16_f32 v{160 + r * 4 + jj}, v{lo}, v{lo + 1}", [f"v{lo}", f"v{lo + 1}"], [f"v{160 + r * 4 + jj}"])
        p.vstore(f"buffer_store_dwordx4 {rng('v', 160 + 4 * r, 4)}, v251, s[28:31], 0 offen offset:{r * 16}",
                 R("v", 160 + 4 * r, 4) + ["v251"] + R("s", 28, 4))
    p.label("L_k2_end")
    p.other("s_endpgm")
    return p


HEADER = """; Two-kernel implementation (generated by a hand-written python generator).
; @launch kernel=k1_kernel grid=(256,1,1) block=(256,1,1) lds=163840
; @launch kernel=k2_kernel grid=(192,1,1) block=(256,1,1) lds=0
.amdgcn_target "amdgcn-amd-amdhsa--gfx950"
.text
"""


HEADER1 = """; Single fused kernel (generated by a hand-written python generator).
; @launch grid=(256,1,1) block=(256,1,1) lds=163840
.amdgcn_target "amdgcn-amd-amdhsa--gfx950"
.text
"""


def kd(name, nvgpr, accum):
    return f""".amdhsa_kernel {name}
  .amdhsa_next_free_vgpr {nvgpr}
  .amdhsa_next_free_sgpr 102
  .amdhsa_accum_offset {accum}
  .amdhsa_group_segment_fixed_size 0
  .amdhsa_kernarg_size 104
  .amdhsa_user_sgpr_count 2
  .amdhsa_user_sgpr_kernarg_segment_ptr 1
  .amdhsa_system_sgpr_workgroup_id_x 1
.end_amdhsa_kernel
"""


def main():
    t1, i1 = finalize(gen_k1())
    t2, i2 = finalize(gen_k2())
    if FUSE:
        s = HEADER1
        name = NAME + "_kernel"
        s += f".globl {name}\n.p2align 8\n.type {name},@function\n{name}:\n{t1}"
        s += '.section .rodata,"a"\n.p2align 6\n'
        s += kd(name, 512, 256)
    else:
        s = HEADER
        for name, t in (("k1_kernel", t1), ("k2_kernel", t2)):
            s += f".globl {name}\n.p2align 8\n.type {name},@function\n{name}:\n{t}"
        s += '.section .rodata,"a"\n.p2align 6\n'
        s += kd("k1_kernel", 512, 256)
        s += ".p2align 6\n"
        s += kd("k2_kernel", 256, 256)
    open(OUT, "w").write(s)
    print("k1 instrs", len(i1), "k2 instrs", len(i2))


if __name__ == "__main__":
    main()
```

```python
import math
import struct
import sys

sys.path.insert(0, "work")
from asmgen import *

NAME = "concat_heads__gqa_block_cached__gqa_block_cached__near_ridge"
OUT = f"cdna_kernels/{NAME}.s"
PROF = len(sys.argv) > 1 and sys.argv[1] == "prof"
FLAGS = set(sys.argv[2:])
if PROF:
    OUT = "prof%s.s" % "".join(sys.argv[2:])
if len(sys.argv) > 1 and sys.argv[1] == "var":
    OUT = "var%s.s" % "".join(sys.argv[2:])


KVN = 3
for f_ in FLAGS:
    if f_.startswith("kv"):
        KVN = int(f_[2:])


NTKV = " nt" if "kvnt" in FLAGS else ""
NTX = " nt" if "ntx" in FLAGS else ""
NTW = " nt" if "ntw" in FLAGS else ""
NTS = " nt" if "nts" in FLAGS else ""
if "scs" in FLAGS:
    NTS = " sc1"
if "scs2" in FLAGS:
    NTS = " sc0 sc1"
NTP = " nt" if "ntp" in FLAGS else ""


NSP = "nsp" in FLAGS
FUSE = "fuse" in FLAGS or NSP
if FUSE and not NTS:
    NTS = " sc1"


def f32bits(x):
    return struct.unpack("<I", struct.pack("<f", x))[0]


def stamp(p, idx):
    if PROF:
        p.other(f"s_memtime s[{80 + 2 * idx}:{81 + 2 * idx}]")
        p.other("s_waitcnt lgkmcnt(0)")


def dump_stamps(p, n, wgs=(0, 9, 100, 255)):
    if not PROF:
        return
    p.other("s_load_dwordx2 s[76:77], s[0:1], 88")
    p.other("s_waitcnt lgkmcnt(0)")
    p.salu("s_mov_b32 s78, 256", [], ["s78"])
    p.salu("s_mov_b32 s79, 0x20000", [], ["s79"])
    p.salu("s_cmp_lg_u32 s44, 0", ["s44"], ["scc"])
    lab = f"L_nost_{id(p)}"
    p.salu(f"s_cbranch_scc1 {lab}", ["scc"])
    HP = "hp" in FLAGS
    if HP:
        wgs = (0, 255)
    for k, wg in enumerate(wgs):
        l2 = f"L_st_{id(p)}_{k}"
        p.salu(f"s_cmp_lg_u32 s2, {wg}", ["s2"], ["scc"])
        p.salu(f"s_cbranch_scc1 {l2}", ["scc"])
        for i in range(1 if HP else 0, n):
            p.salu(f"s_sub_u32 s3, s{80 + 2 * i}, s80", [f"s{80 + 2 * i}", "s80"], ["s3"])
            p.valu("v_mov_b32 v250, s3", ["s3"], ["v250"])
            p.valu(f"v_mov_b32 v251, {(k * 7 + i + 1) * 4 if HP else (k * 8 + i) * 4 + 128}", [], ["v251"])
            p.vstore("buffer_store_dword v250, v251, s[76:79], 0 offen", ["v250", "v251"] + R("s", 76, 4))
            p.waitall()
        p.label(l2)
    p.label(lab)


class G:
    def __init__(self):
        self.p = Prog()

    def take(self):
        r = self.p.ins
        self.p.ins = []
        return r


def gated_merge(main, fill, ratio):
    out = []
    mi = fi = 0
    while mi < len(main) or fi < len(fill):
        progressed = False
        if mi < len(main) and main[mi][1] < fi:
            out.extend(main[mi][0])
            mi += 1
            progressed = True
            k = 0
            while k < ratio and fi < len(fill) and fill[fi][1] < mi:
                out.extend(fill[fi][0])
                fi += 1
                k += 1
        else:
            if fi < len(fill) and fill[fi][1] < mi:
                out.extend(fill[fi][0])
                fi += 1
                progressed = True
        assert progressed, (mi, fi)
    return out


def spread(mf, fl):
    out = []
    n, m = len(mf), len(fl)
    k = 0
    for i, x in enumerate(mf):
        out.extend(x)
        tgt = ((i + 1) * m + n - 1) // n
        while k < min(tgt, m):
            out.extend(fl[k])
            k += 1
    return out


def fused_tail(p):
    S = p.salu
    V = p.valu
    O = p.other
    S("s_add_u32 s20, s16, 0x2000000", ["s16"], ["s20"])
    S("s_addc_u32 s21, s17, 0", ["s17"], ["s21"])
    S("s_mov_b32 s22, 4096", [], ["s22"])
    S("s_mov_b32 s23, 0x20000", [], ["s23"])
    S("s_mov_b32 s24, s76", ["s76"], ["s24"])
    S("s_mov_b32 s25, s77", ["s77"], ["s25"])
    S("s_mov_b32 s26, 3145728", [], ["s26"])
    S("s_mov_b32 s27, 0x20000", [], ["s27"])
    S("s_mul_i32 s3, s47, 786432", ["s47"], ["s3"])
    S("s_add_u32 s28, s16, s3", ["s16", "s3"], ["s28"])
    S("s_addc_u32 s29, s17, 0", ["s17"], ["s29"])
    S("s_mov_b32 s30, 786432", [], ["s30"])
    S("s_mov_b32 s31, 0x20000", [], ["s31"])
    for hg in range(1, 8):
        S(f"s_mov_b32 s{50 + hg}, {hg * 98304}", [], [f"s{50 + hg}"])
    S("s_mov_b32 s60, 0xffff0000", [], ["s60"])
    S("s_lshl_b32 s71, s47, 7", ["s47"], ["s71"])
    S("s_lshl_b32 s70, s46, 3", ["s46"], ["s70"])
    S("s_add_u32 s70, s70, s71", ["s70", "s71"], ["s70"])
    S("s_lshl_b32 s72, 1, s46", ["s46"], ["s72"])
    S("s_mul_i32 s61, s48, 196608", ["s48"], ["s61"])
    S("s_lshl_b32 s3, s49, 10", ["s49"], ["s3"])
    S("s_add_u32 s61, s61, s3", ["s61", "s3"], ["s61"])
    V("v_lshlrev_b32 v250, 4, v255", ["v255"], ["v250"])
    V("v_and_b32 v251, 15, v255", ["v255"], ["v251"])
    V("v_lshrrev_b32 v252, 4, v255", ["v255"], ["v252"])
    if NSP:
        V("v_and_b32 v246, 1, v252", ["v252"], ["v246"])
        V("v_lshrrev_b32 v252, 1, v252", ["v252"], ["v252"])
        V("v_lshlrev_b32 v252, 5, v252", ["v252"], ["v252"])
        V("v_lshl_add_u32 v252, v246, 6, v252", ["v246", "v252"], ["v252"])
    else:
        V("v_lshlrev_b32 v252, 6, v252", ["v252"], ["v252"])
    V("v_lshl_add_u32 v251, v251, 11, v252", ["v251", "v252"], ["v251"])
    V("v_lshl_add_u32 v249, v255, 3, s71", ["s71", "v255"], ["v249"])
    V("v_mov_b32 v248, s70", ["s70"], ["v248"])
    V("v_mov_b32 v247, 0", [], ["v247"])
    p.waitall()
    stamp(p, 5)
    p.barrier()
    O("s_cmp_lg_u32 s44, 0")
    O("s_cbranch_scc1 L_f_wait")
    O("s_mov_b64 exec, 1")
    O("v_mov_b32 v244, s6")
    O("v_mov_b32 v245, s7")
    O("s_nop 1")
    O("buffer_store_dwordx2 v[244:245], v248, s[20:23], 0 offen sc1")
    O("s_mov_b64 exec, 0xff")
    O("s_mov_b32 s73, 400")
    p.label("L_f_spin")
    O("buffer_load_dwordx2 v[240:241], v249, s[20:23], 0 offen sc1")
    O("s_waitcnt vmcnt(0)")
    O("v_and_b32 v242, 0x7fffffff, v241")
    O("v_cmp_eq_u32 vcc, s6, v240")
    O("v_cmp_eq_u32 s[70:71], s7, v242")
    O("s_nop 3")
    O("s_and_b32 s70, s70, vcc_lo")
    O("s_cmp_eq_u32 s70, 0xff")
    O("s_cbranch_scc1 L_f_all")
    O("s_sleep 1")
    O("s_sub_u32 s73, s73, 1")
    O("s_cmp_lg_u32 s73, 0")
    O("s_cbranch_scc1 L_f_spin")
    O("s_mov_b64 exec, 1")
    O("v_or_b32 v245, 0x80000000, v245")
    O("s_nop 1")
    O("buffer_store_dwordx2 v[244:245], v248, s[20:23], 0 offen sc1")
    O("s_waitcnt vmcnt(0)")
    O("s_mov_b64 exec, 0xff")
    O("buffer_load_dwordx2 v[240:241], v249, s[20:23], 0 offen sc1")
    O("s_waitcnt vmcnt(0)")
    O("v_and_b32 v242, 0x7fffffff, v241")
    O("v_cmp_eq_u32 vcc, s6, v240")
    O("v_cmp_eq_u32 s[70:71], s7, v242")
    O("s_nop 3")
    O("s_and_b32 s70, s70, vcc_lo")
    O("s_cmp_eq_u32 s70, 0xff")
    O("s_cbranch_scc1 L_f_all")
    O("s_mov_b32 s72, 0")
    O("s_branch L_f_pub")
    p.label("L_f_all")
    O("v_cmp_gt_i32 vcc, 0, v241")
    O("s_nop 3")
    O("s_or_b32 s72, s72, vcc_lo")
    p.label("L_f_pub")
    O("s_mov_b64 exec, 1")
    O("v_mov_b32 v248, s72")
    O("s_nop 1")
    O("ds_write_b32 v247, v248")
    O("s_waitcnt lgkmcnt(0)")
    O("s_mov_b64 exec, -1")
    p.label("L_f_wait")
    p.barrier()
    O("ds_read_b32 v248, v247")
    O("s_waitcnt lgkmcnt(0)")
    O("v_readfirstlane_b32 s72, v248")
    O("s_nop 3")
    stamp(p, 6)
    O("s_cmp_ge_u32 s44, 3")
    O("s_cbranch_scc1 L_k1_fin")
    p.label("L_f_loop")
    O("s_cmp_eq_u32 s72, 0")
    O("s_cbranch_scc1 L_k1_fin")
    O("s_ff1_i32_b32 s73, s72")
    O("s_bitset0_b32 s72, s73")
    O("s_mul_i32 s73, s73, 3")
    O("s_add_u32 s73, s73, s44")
    O("s_mul_i32 s3, s73, 43")
    O("s_lshr_b32 s70, s3, 8")
    O("s_mul_i32 s3, s70, 6")
    O("s_sub_u32 s71, s73, s3")
    if NSP:
        O("s_mul_i32 s3, s70, 24576")
        O("s_lshl_b32 s74, s71, 11")
        O("s_add_u32 s3, s3, s74")
    else:
        O("s_lshl_b32 s3, s73, 12")
    S("s_lshl_b32 s74, s71, 15", ["s71"], ["s74"])
    S("s_lshl_b32 s75, s70, 8", ["s70"], ["s75"])
    S("s_add_u32 s74, s74, s75", ["s74", "s75"], ["s74"])
    S("s_add_u32 s74, s74, s61", ["s74", "s61"], ["s74"])
    V("v_add_u32 v252, s3, v250", ["s3", "v250"], ["v252"])
    V("v_add_u32 v253, s74, v251", ["s74", "v251"], ["v253"])
    V("v_add_u32 v254, 12288, v252", ["v252"], ["v254"])
    for hg in range(8):
        for r in range(4):
            d = (hg * 4 + r) * 4
            so = "0" if hg == 0 else f"s{50 + hg}"
            va = "v254" if (NSP and r >= 2) else "v252"
            of = (r & 1) * 1024 if NSP else r * 1024
            p.vload(f"buffer_load_dwordx4 {rng('v', d, 4)}, {va}, s[28:31], {so} offen offset:{of} sc1",
                    [va] + R("s", 28, 4) + ([so] if hg else []), R("v", d, 4))
    ACC = 128
    for hg in range(8):
        for r in range(4):
            for jj in range(4):
                s_ = (hg * 4 + r) * 4 + jj
                lo = ACC + (r * 4 + jj) * 2
                if hg == 0:
                    V(f"v_lshlrev_b32 v{lo}, 16, v{s_}", [f"v{s_}"], [f"v{lo}"])
                    V(f"v_and_b32 v{lo + 1}, s60, v{s_}", ["s60", f"v{s_}"], [f"v{lo + 1}"])
                else:
                    t = 244 + 2 * (jj & 1)
                    V(f"v_lshlrev_b32 v{t}, 16, v{s_}", [f"v{s_}"], [f"v{t}"])
                    V(f"v_and_b32 v{t + 1}, s60, v{s_}", ["s60", f"v{s_}"], [f"v{t + 1}"])
                    V(f"v_pk_add_f32 v[{lo}:{lo + 1}], v[{lo}:{lo + 1}], v[{t}:{t + 1}]",
                      [f"v{lo}", f"v{lo + 1}", f"v{t}", f"v{t + 1}"], [f"v{lo}", f"v{lo + 1}"])
    if NSP:
        for H in range(2):
            for rr in range(2):
                for c in range(4):
                    lo = ACC + ((H * 2 + rr) * 4 + c) * 2
                    d = 160 + (H * 2 + (c >> 1)) * 4 + rr * 2 + (c & 1)
                    V(f"v_cvt_pk_bf16_f32 v{d}, v{lo}, v{lo + 1}", [f"v{lo}", f"v{lo + 1}"], [f"v{d}"])
            for st in range(2):
                d = 160 + (H * 2 + st) * 4
                for k in range(2):
                    p.perm(f"v_permlane32_swap_b32 v{d + k}, v{d + k + 2}", [f"v{d + k}", f"v{d + k + 2}"], [f"v{d + k}", f"v{d + k + 2}"])
            for st in range(2):
                d = 160 + (H * 2 + st) * 4
                p.vstore(f"buffer_store_dwordx4 {rng('v', d, 4)}, v253, s[24:27], 0 offen offset:{H * 128 + st * 16}",
                         R("v", d, 4) + ["v253"] + R("s", 24, 4))
    else:
        for r in range(4):
            for jj in range(4):
                lo = ACC + (r * 4 + jj) * 2
                V(f"v_cvt_pk_bf16_f32 v{160 + r * 4 + jj}, v{lo}, v{lo + 1}", [f"v{lo}", f"v{lo + 1}"], [f"v{160 + r * 4 + jj}"])
            of = (r >> 1) * 128 + (r & 1) * 16 if NSP else r * 16
            p.vstore(f"buffer_store_dwordx4 {rng('v', 160 + 4 * r, 4)}, v253, s[24:27], 0 offen offset:{of}",
                     R("v", 160 + 4 * r, 4) + ["v253"] + R("s", 24, 4))
    p.waitall()
    O("s_branch L_f_loop")
    p.label("L_k1_fin")
    stamp(p, 7)


def gen_k1():
    p = Prog()
    S = p.salu
    V = p.valu
    g = G()
    q = g.p
    p.label("L_k1_start")
    S("s_cmp_ge_u32 s2, 256", ["s2"], ["scc"])
    S("s_cbranch_scc1 L_k1_end", ["scc"])
    if "map0" in FLAGS:
        S("s_and_b32 s46, s2, 7", ["s2"], ["s46"])
        S("s_lshr_b32 s47, s2, 3", ["s2"], ["s47"])
        S("s_and_b32 s48, s47, 15", ["s47"], ["s48"])
        S("s_lshr_b32 s49, s47, 4", ["s47"], ["s49"])
    else:
        S("s_and_b32 s46, s2, 3", ["s2"], ["s46"])
        S("s_lshl_b32 s46, s46, 1", ["s46"], ["s46"])
        S("s_lshr_b32 s3, s2, 7", ["s2"], ["s3"])
        S("s_add_u32 s46, s46, s3", ["s46", "s3"], ["s46"])
        S("s_bfe_u32 s48, s2, 0x40003", ["s2"], ["s48"])
        S("s_bfe_u32 s49, s2, 0x10002", ["s2"], ["s49"])
        S("s_lshl_b32 s47, s49, 4", ["s49"], ["s47"])
        S("s_add_u32 s47, s47, s48", ["s47", "s48"], ["s47"])
    S("s_mul_i32 s3, s49, 40", ["s49"], ["s3"])
    S("s_add_u32 s4, s0, s3", ["s0", "s3"], ["s4"])
    S("s_addc_u32 s5, s1, 0", ["s1"], ["s5"])
    p.other("s_load_dwordx8 s[8:15], s[4:5], 0")
    p.other("s_load_dwordx2 s[18:19], s[4:5], 32")
    p.other("s_load_dwordx2 s[16:17], s[0:1], 96")
    if FUSE:
        p.other("s_load_dwordx4 s[76:79], s[0:1], 80")
        p.other("s_memrealtime s[6:7]")
    V("v_lshrrev_b32 v254, 6, v0", ["v0"], ["v254"])
    V("v_and_b32 v255, 63, v0", ["v0"], ["v255"])
    V("v_readfirstlane_b32 s44, v254", ["v254"], ["s44"])
    S("s_lshl_b32 s45, s46, 2", ["s46"], ["s45"])
    S("s_add_u32 s45, s45, s44", ["s45", "s44"], ["s45"])
    for s_ in range(1, 8):
        S(f"s_mov_b32 s{50 + s_}, {s_ * 8192}", [], [f"s{50 + s_}"])
    for kt in range(1, 6):
        S(f"s_mov_b32 s{58 + kt}, {kt * 4096}", [], [f"s{58 + kt}"])
    cexp = (128.0 ** -0.5) * math.log2(math.e)
    S(f"s_mov_b32 s64, {f32bits(cexp):#x}", [], ["s64"])
    S("s_mov_b32 s65, 0x05040100", [], ["s65"])
    S("s_mov_b32 s66, 0x07060302", [], ["s66"])
    S("s_lshl_b32 s67, s44, 11", ["s44"], ["s67"])

    def sR(s_):
        return "0" if s_ == 0 else f"s{50 + s_}"

    def sK(kt):
        return "0" if kt == 0 else f"s{58 + kt}"

    L = "v255"
    V(f"v_lshrrev_b32 v248, 4, {L}", [L], ["v248"])
    V(f"v_and_b32 v249, 15, {L}", [L], ["v249"])
    V("v_and_b32 v250, 3, v249", ["v249"], ["v250"])
    V("v_lshrrev_b32 v251, 2, v249", ["v249"], ["v251"])
    V("v_lshl_add_u32 v250, v250, 2, v251", ["v250", "v251"], ["v250"])
    V("v_lshlrev_b32 v250, 4, v250", ["v250"], ["v250"])
    vW, vK, vV = "v224", "v225", "v226"
    vXd = ["v227", "v228"]
    vXr = [["v229", "v230"], ["v231", "v232"]]
    vWo, vOw, vOr, vSt = "v252", "v253", "v254", "v253"
    V(f"v_lshl_add_u32 {vW}, v248, 16, v250", ["v248", "v250"], [vW])
    V(f"v_lshl_add_u32 {vV}, v248, 10, v250", ["v248", "v250"], [vV])
    V("v_lshlrev_b32 v251, 4, v248", ["v248"], ["v251"])
    V(f"v_lshl_add_u32 {vK}, v249, 8, v251", ["v249", "v251"], [vK])
    S("s_lshl_b32 s3, s44, 1", ["s44"], ["s3"])
    for c in range(2):
        S(f"s_add_u32 s70, s3, {c}", ["s3"], ["s70"])
        V(f"v_xor_b32 v251, s70, {L}", ["s70", L], ["v251"])
        V("v_lshlrev_b32 v251, 4, v251", ["v251"], ["v251"])
        V(f"v_add_u32 {vXd[c]}, s67, v251", ["s67", "v251"], [vXd[c]])
    p.other("s_waitcnt lgkmcnt(0)")
    if FUSE:
        S("s_cmp_eq_u32 s44, 0", ["s44"], ["scc"])
        S("s_cselect_b32 s4, 1, 0", ["scc"], ["s4"])
        S("s_mov_b32 s5, 0", [], ["s5"])
    S("s_mul_i32 s3, s48, 98304", ["s48"], ["s3"])
    S("s_add_u32 s20, s8, s3", ["s8", "s3"], ["s20"])
    S("s_addc_u32 s21, s9, 0", ["s9"], ["s21"])
    S("s_mov_b32 s22, 98304", [], ["s22"])
    S("s_mov_b32 s23, 0x20000", [], ["s23"])
    S("s_lshl_b32 s3, s45, 8", ["s45"], ["s3"])
    S("s_add_u32 s96, s14, s3", ["s14", "s3"], ["s96"])
    S("s_addc_u32 s97, s15, 0", ["s15"], ["s97"])
    if "norot" in FLAGS:
        S("s_mov_b32 s98, 0", [], ["s98"])
        S("s_mov_b32 s101, 0", [], ["s101"])
    else:
        S("s_and_b32 s98, s48, 7", ["s48"], ["s98"])
        S("s_lshl_b32 s98, s98, 1", ["s98"], ["s98"])
        S("s_mov_b32 s101, s48", ["s48"], ["s101"])
    S("s_lshr_b32 s50, s98, 1", ["s98"], ["s50"])
    S("s_mov_b32 s58, s101", ["s101"], ["s58"])
    S("s_mov_b32 s26, 262144", [], ["s26"])
    S("s_mov_b32 s27, 0x20000", [], ["s27"])

    RING = [0, 32, 64, 96]
    BF = 128
    T = 176
    KV = 192

    def w_loads(dst, first):
        out = []
        q.salu("s_lshl_b32 s71, s98, 18", ["s98"], ["s71"])
        q.salu("s_add_u32 s24, s96, s71", ["s96", "s71"], ["s24"])
        q.salu("s_addc_u32 s25, s97, 0", ["s97"], ["s25"])
        q.salu("s_add_u32 s98, s98, 1", ["s98"], ["s98"])
        q.salu("s_and_b32 s98, s98, 15", ["s98"], ["s98"])
        for s_ in range(8):
            so = sR(s_)
            q.vload(f"buffer_load_dwordx4 {rng('v', dst + 4 * s_, 4)}, {vW}, s[24:27], {so} offen{NTW}",
                    [vW] + R("s", 24, 4) + ([so] if s_ else []), R("v", dst + 4 * s_, 4))
            out.append(g.take())
        return out

    def kfrag(kt, r):
        n = kt * 4 + r
        return ("a", 192 + 4 * n) if n < 16 else ("v", KV + 4 * (n - 16))

    stamp(p, 0)
    S("s_lshl_b32 s68, s44, 14", ["s44"], ["s68"])
    S("s_add_u32 s68, s68, 98304", ["s68"], ["s68"])
    S("s_lshl_b32 s69, s48, 5", ["s48"], ["s69"])
    S("s_lshl_b32 s3, s44, 3", ["s44"], ["s3"])
    S("s_add_u32 s69, s69, s3", ["s69", "s3"], ["s69"])
    S("s_lshl_b32 s3, s69, 13", ["s69"], ["s3"])
    S("s_lshl_b32 s70, s46, 10", ["s46"], ["s70"])
    S("s_add_u32 s3, s3, s70", ["s3", "s70"], ["s3"])
    S("s_add_u32 s72, s14, s3", ["s14", "s3"], ["s72"])
    S("s_addc_u32 s73, s15, 0", ["s15"], ["s73"])
    S("s_mov_b32 s74, 65536", [], ["s74"])
    S("s_mov_b32 s75, 0x20000", [], ["s75"])
    S("s_mov_b32 m0, s68", ["s68"], ["m0"])

    V(f"v_lshlrev_b32 {vOr}, 4, {L}", [L], [vOr])
    if "notouch" not in FLAGS:
        for r in range(8):
            so = sR(r)
            p.dma(f"buffer_load_dwordx4 {vOr}, s[72:75], {so} offen lds", [vOr] + R("s", 72, 4) + ([so] if r else []))
    for it in w_loads(RING[0], True):
        p.ins.extend(it)
    if "st1" in FLAGS:
        stamp(p, 1)
    for m in range(12):
        for c in range(2):
            off = (8 * m + c) * 1024
            S(f"s_add_u32 m0, s67, {off}", ["s67"], ["m0"])
            S(f"s_mov_b32 s70, {off}", [], ["s70"])
            p.dma(f"buffer_load_dwordx4 {vXd[c]}, s[20:23], s70 offen{NTX} lds", [vXd[c], "s70"] + R("s", 20, 4), tag="x")
    if "ct" in FLAGS:
        p.other("s_getpc_b64 s[72:73]")
        p.label("L_pc0")
        S("s_sub_u32 s72, s72, L_pc0-L_k1_start", ["s72"], ["s72"])
        S("s_subb_u32 s73, s73, 0", ["s73"], ["s73"])
        S("s_mov_b32 s74, L_k1_code_end-L_k1_start", [], ["s74"])
        S("s_mov_b32 m0, s68", ["s68"], ["m0"])
        NB = 15
        S(f"s_mul_i32 s70, s44, {NB * 1024}", ["s44"], ["s70"])
        for k in range(NB):
            p.dma(f"buffer_load_dwordx4 {vOr}, s[72:75], s70 offen lds", [vOr, "s70"] + R("s", 72, 4))
            if k + 1 < NB:
                S("s_add_u32 s70, s70, 1024", ["s70"], ["s70"])
        S("s_mov_b32 s74, 65536", [], ["s74"])
    if "st1" in FLAGS:
        stamp(p, 2)
    if "oldstart" in FLAGS:
        for st in range(1, 4):
            for it in w_loads(RING[st], False):
                p.ins.extend(it)
            if "st1" in FLAGS:
                stamp(p, 2 + st)
    S("s_lshl_b32 s3, s48, 5", ["s48"], ["s3"])
    S("s_add_u32 s3, s3, s45", ["s3", "s45"], ["s3"])
    S("s_mul_i32 s3, s3, 24576", ["s3"], ["s3"])
    S("s_add_u32 s28, s10, s3", ["s10", "s3"], ["s28"])
    S("s_addc_u32 s29, s11, 0", ["s11"], ["s29"])
    S("s_mov_b32 s30, 24576", [], ["s30"])
    S("s_mov_b32 s31, 0x20000", [], ["s31"])
    S("s_add_u32 s32, s12, s3", ["s12", "s3"], ["s32"])
    S("s_addc_u32 s33, s13, 0", ["s13"], ["s33"])
    S("s_mov_b32 s34, 24576", [], ["s34"])
    S("s_mov_b32 s35, 0x20000", [], ["s35"])
    S("s_lshl_b32 s3, s47, 3", ["s47"], ["s3"])
    S("s_add_u32 s3, s3, s46", ["s3", "s46"], ["s3"])
    S("s_mul_i32 s3, s3, 98304", ["s3"], ["s3"])
    S("s_add_u32 s36, s16, s3", ["s16", "s3"], ["s36"])
    S("s_addc_u32 s37, s17, 0", ["s17"], ["s37"])
    S("s_mov_b32 s38, 98304", [], ["s38"])
    S("s_mov_b32 s39, 0x20000", [], ["s39"])
    S("s_lshl_b32 s3, s46, 19", ["s46"], ["s3"])
    S("s_add_u32 s99, s18, s3", ["s18", "s3"], ["s99"])
    S("s_addc_u32 s100, s19, 0", ["s19"], ["s100"])
    S(f"s_mov_b32 s42, {65536 if NSP else 32768}", [], ["s42"])
    S("s_mov_b32 s43, 0x20000", [], ["s43"])
    V("v_and_b32 v250, 7, v249", ["v249"], ["v250"])
    V("v_lshlrev_b32 v251, 10, v249", ["v249"], ["v251"])
    for par in range(2):
        V(f"v_add_u32 v246, {4 * par}, v248", ["v248"], ["v246"])
        V("v_xor_b32 v246, v246, v250", ["v246", "v250"], ["v246"])
        V(f"v_lshl_add_u32 {vXr[par][0]}, v246, 4, v251", ["v246", "v251"], [vXr[par][0]])
        V(f"v_add_u32 {vXr[par][1]}, 49152, {vXr[par][0]}", [vXr[par][0]], [vXr[par][1]])
    S("s_mul_i32 s3, s44, 24576", ["s44"], ["s3"])
    V(f"v_lshlrev_b32 {vOr}, 4, {L}", [L], [vOr])
    V(f"v_add_u32 {vOw}, s3, {vOr}", ["s3", vOr], [vOw])
    S("s_lshl_b32 s3, s44, 8", ["s44"], ["s3"])
    V("v_lshlrev_b32 v251, 4, v249", ["v249"], ["v251"])
    if NSP:
        V("v_and_b32 v251, 7, v249", ["v249"], ["v251"])
        V("v_lshlrev_b32 v251, 4, v251", ["v251"], ["v251"])
        V("v_lshrrev_b32 v246, 3, v249", ["v249"], ["v246"])
        V("v_lshl_add_u32 v251, v246, 15, v251", ["v246", "v251"], ["v251"])
    V(f"v_lshl_add_u32 {vWo}, v248, 13, v251", ["v248", "v251"], [vWo])
    V(f"v_add_u32 {vWo}, s3, {vWo}", ["s3", vWo], [vWo])

    def acc(j, qt):
        return ("a", (qt * 8 + j) * 4)

    def perms(raw, m, tdst):
        out = []
        for hi in range(2):
            for pp in range(4):
                a = raw + 4 * (2 * pp) + m
                b = raw + 4 * (2 * pp + 1) + m
                d = tdst + 4 * hi + pp
                sel = "s66" if hi else "s65"
                q.valu(f"v_perm_b32 v{d}, v{b}, v{a}, {sel}", [f"v{a}", f"v{b}", sel], [f"v{d}"])
                out.append(g.take())
        return out

    def x_reads(step, bf):
        out = []
        q.salu(f"s_add_u32 s71, s50, {step >> 1}", ["s50"], ["s71"])
        q.salu("s_and_b32 s71, s71, 7", ["s71"], ["s71"])
        q.salu("s_lshl_b32 s71, s71, 7", ["s71"], ["s71"])
        for hf in range(2):
            q.valu(f"v_add_u32 v{233 + hf}, s71, {vXr[step & 1][hf]}", ["s71", vXr[step & 1][hf]], [f"v{233 + hf}"])
        out.append(g.take())
        for qt in range(6):
            ar = f"v{233 + qt // 3}"
            d = bf + 4 * qt
            q.dsr(f"ds_read_b128 {rng('v', d, 4)}, {ar} offset:{(qt % 3) * 16384}",
                  [ar], R("v", d, 4))
            out.append(g.take())
        return out

    def gemm(ring, bfb, tb, b_reads, next_loads, pre_done=False, stamps=None, extra=None):
        if not pre_done:
            for it in b_reads(0, bfb):
                p.ins.extend(it)
        for it in perms(ring[0], 0, tb):
            p.ins.extend(it)
        for s_ in range(16):
            bf = bfb + 24 * (s_ & 1)
            for m in range(4):
                tcur = tb + 8 * (m & 1)
                tnext = tb + 8 * ((m + 1) & 1)
                mf = []
                for qt in range(6):
                    for jj in range(2):
                        q.mfma16(acc(2 * m + jj, qt), ("v", tcur + 4 * jj), ("v", bf + 4 * qt),
                                 None if s_ == 0 else acc(2 * m + jj, qt))
                        mf.append(g.take())
                fl = []
                if m < 3:
                    fl += perms(ring[s_ % 4], m + 1, tnext)
                elif s_ + 1 < 16:
                    fl += perms(ring[(s_ + 1) % 4], 0, tnext)
                if m == 0 and s_ + 1 < 16:
                    fl += b_reads(s_ + 1, bfb + 24 * ((s_ + 1) & 1))
                if m == 3:
                    fl = next_loads(s_) + fl
                if extra:
                    fl = extra(s_, m) + fl
                p.ins.extend(spread(mf, fl))
            if stamps and s_ in stamps:
                stamp(p, stamps[s_])

    def v_loads(u, dst):
        out = []
        for s_ in range(8):
            so = sK(2 * u + (s_ >> 2))
            q.vload(f"buffer_load_dwordx4 {rng('v', dst + 4 * s_, 4)}, {vV}, s[32:35], {so} offen offset:{(s_ & 3) * 256}{NTKV}",
                    [vV] + R("s", 32, 4) + ([so] if so != "0" else []), R("v", dst + 4 * s_, 4))
            out.append(g.take())
        return out

    def k_loads(ns):
        out = []
        for n in ns:
            kt, r = n >> 2, n & 3
            pf, b0 = kfrag(kt, r)
            so = sK(kt)
            q.vload(f"buffer_load_dwordx4 {rng(pf, b0, 4)}, {vK}, s[28:31], {so} offen offset:{r * 64}{NTKV}",
                    [vK] + R("s", 28, 4) + ([so] if kt else []), R(pf, b0, 4))
            out.append(g.take())
        return out

    def v_dma(ns):
        out = []
        for n in ns:
            u, s_ = n >> 3, n & 7
            so = sK(2 * u + (s_ >> 2))
            q.salu(f"s_add_u32 m0, s68, {n * 1024 - (s_ & 3) * 256}", ["s68"], ["m0"])
            q.dma(f"buffer_load_dwordx4 {vV}, s[32:35], {so} offen offset:{(s_ & 3) * 256}{NTKV} lds",
                  [vV] + R("s", 32, 4) + ([so] if so != "0" else []), tag="vd")
            out.append(g.take())
        return out

    def next_a(s_):
        out = []
        if s_ + 4 < 16 and "nold" not in FLAGS:
            out += w_loads(RING[s_ % 4], False)
        if "nokv" in FLAGS:
            return out
        if "latekv" in FLAGS:
            if s_ >= 11:
                for n in range(8 * (s_ - 11), 8 * (s_ - 11) + 8):
                    out += k_loads([n]) if n < 24 else v_dma([n - 24])
        else:
            for n in range(KVN * s_, min(KVN * s_ + KVN, 40)):
                out += k_loads([n]) if n < 24 else v_dma([n - 24])
        if s_ == 14:
            out += v_loads(2, RING[2])
        return out

    def touch_q():
        out = []
        q.salu("s_lshl_b32 s3, s69, 10", ["s69"], ["s3"])
        q.salu("s_add_u32 s72, s99, s3", ["s99", "s3"], ["s72"])
        q.salu("s_addc_u32 s73, s100, 0", ["s100"], ["s73"])
        out.append(g.take())
        return out

    if "oldstart" in FLAGS:
        for it in touch_q():
            p.ins.extend(it)

    def extra_a(s_, m):
        if "oldstart" in FLAGS:
            return []
        if s_ == 0 and m < 3:
            return w_loads(RING[m + 1], False)
        if s_ == 1 and m == 1:
            return touch_q()
        return []
    if "st1" in FLAGS:
        stamp(p, 6)
        p.barrier(needs=["x"])
        stamp(p, 7)
        gemm(RING, BF, T, x_reads, next_a, extra=extra_a)
    elif "st0" in FLAGS:
        stamp(p, 1)
        p.valu("v_mov_b32 v246, v0", ["v0"], ["v246"])
        stamp(p, 2)
        p.other("s_nop 0", needs=["x"])
        stamp(p, 3)
        p.barrier(needs=["x"])
        stamp(p, 4)
        gemm(RING, BF, T, x_reads, next_a, stamps={0: 5, 1: 6, 2: 7}, extra=extra_a)
    else:
        p.barrier(needs=["x"])
        if not NSP:
            stamp(p, 1)
        gemm(RING, BF, T, x_reads, next_a, stamps=None if FUSE else {3: 2, 9: 3}, extra=extra_a)
        stamp(p, 2 if FUSE else 4)
    p.barrier()

    QF = 176
    SACC = [128, 152]
    PB = 224
    STG = 236
    TMP = 244
    VT = [RING[3], RING[0], RING[1]]
    main = []
    fill = []

    def one(gate):
        for i in g.take():
            fill.append(([i], gate))

    def conv(qt, r, dst, gate):
        for jj in range(4):
            t0, t1 = TMP + 2 * (jj & 1), TMP + 2 * (jj & 1) + 1
            a0 = acc(2 * jj, qt)[1] + r
            a1 = acc(2 * jj + 1, qt)[1] + r
            q.valu(f"v_accvgpr_read_b32 v{t0}, a{a0}", [f"a{a0}"], [f"v{t0}"])
            q.valu(f"v_accvgpr_read_b32 v{t1}, a{a1}", [f"a{a1}"], [f"v{t1}"])
            q.valu(f"v_cvt_pk_bf16_f32 v{dst + jj}, v{t0}, v{t1}", [f"v{t0}", f"v{t1}"], [f"v{dst + jj}"])
        one(gate)

    order = ["S0", "S1", "S2", "P0", "S3", "P1", "S4", "P2", "S5", "P3", "P4", "P5"]
    mstart = {nm: 24 * k for k, nm in enumerate(order)}

    def s_part_end(qt, r):
        return mstart[f"S{qt}"] + 6 * r + 5

    def m_end(nm):
        return mstart[nm] + 23

    fidx = {}

    def C(qt):
        for r in range(4):
            gate = -1 if qt == 0 else s_part_end(qt - 1, r)
            conv(qt, r, QF + 4 * r, gate)
            fidx[("C", qt, r)] = len(fill) - 1

    def M(qt):
        b = SACC[qt & 1]
        v = [f"v{b + i}" for i in range(24)]
        gate = min(m_end(f"S{qt}") + 2, 24 * 12 - 1)
        q.valu(f"v_max3_f32 v248, {v[0]}, {v[1]}, {v[2]}", v[0:3], ["v248"])
        i = 3
        while i < 24:
            j = min(i + 1, 23)
            q.valu(f"v_max3_f32 v248, v248, {v[i]}, {v[j]}", ["v248", v[i], v[j]], ["v248"])
            i += 2
        q.valu("v_mov_b32 v249, v248", ["v248"], ["v249"])
        q.perm("v_permlane32_swap_b32 v248, v249", ["v248", "v249"], ["v248", "v249"])
        q.valu("v_max_f32 v248, v248, v249", ["v248", "v249"], ["v248"])
        q.valu("v_mov_b32 v249, v248", ["v248"], ["v249"])
        q.perm("v_permlane16_swap_b32 v248, v249", ["v248", "v249"], ["v248", "v249"])
        q.valu("v_max_f32 v248, v248, v249", ["v248", "v249"], ["v248"])
        q.valu("v_mul_f32 v248, s64, v248", ["s64", "v248"], ["v248"])
        for i in range(24):
            q.valu(f"v_fma_f32 {v[i]}, {v[i]}, s64, -v248", [v[i], "s64", "v248"], [v[i]])
            q.trans(f"v_exp_f32 {v[i]}, {v[i]}", [v[i]], [v[i]])
        q.valu(f"v_add_f32 v250, {v[0]}, {v[1]}", [v[0], v[1]], ["v250"])
        q.valu(f"v_add_f32 v251, {v[2]}, {v[3]}", [v[2], v[3]], ["v251"])
        for i in range(4, 24):
            t = "v250" if i & 1 else "v251"
            q.valu(f"v_add_f32 {t}, {t}, {v[i]}", [t, v[i]], [t])
        q.valu("v_add_f32 v250, v250, v251", ["v250", "v251"], ["v250"])
        q.valu("v_mov_b32 v251, v250", ["v250"], ["v251"])
        q.perm("v_permlane32_swap_b32 v250, v251", ["v250", "v251"], ["v250", "v251"])
        q.valu("v_add_f32 v250, v250, v251", ["v250", "v251"], ["v250"])
        q.valu("v_mov_b32 v251, v250", ["v250"], ["v251"])
        q.perm("v_permlane16_swap_b32 v250, v251", ["v250", "v251"], ["v250", "v251"])
        q.valu("v_add_f32 v250, v250, v251", ["v250", "v251"], ["v250"])
        q.trans("v_rcp_f32 v250, v250", ["v250"], ["v250"])
        for i in range(24):
            q.valu(f"v_mul_f32 {v[i]}, {v[i]}, v250", [v[i], "v250"], [v[i]])
        one(gate)
        gate2 = gate if qt == 0 else max(gate, m_end(f"P{qt - 1}"))
        for pp in range(12):
            q.valu(f"v_cvt_pk_bf16_f32 v{PB + pp}, {v[2 * pp]}, {v[2 * pp + 1]}", [v[2 * pp], v[2 * pp + 1]], [f"v{PB + pp}"])
        one(gate2)
        fidx[("M", qt)] = len(fill) - 1

    def VP():
        q.valu(f"v_add_u32 v248, s68, {vOr}", ["s68", vOr], ["v248"])
        for n in range(16):
            d = RING[n >> 3] + 4 * (n & 7)
            q.dsr(f"ds_read_b128 {rng('v', d, 4)}, v248 offset:{n * 1024}", ["v248"], R("v", d, 4), needs=["vd"], tag="vr")
        one(-1)
        if "notouch" not in FLAGS:
            q.salu("s_mov_b32 m0, s68", ["s68"], ["m0"])
            for r in range(8):
                so = "s59" if r >= 4 else "0"
                q.dma(f"buffer_load_dwordx4 {vOr}, s[72:75], {so} offen offset:{(r & 3) * 1024} lds",
                      [vOr] + R("s", 72, 4) + ([so] if r >= 4 else []), needs=["vr"])
            one(-1)
        for u in range(3):
            for m in range(4):
                for it in perms(RING[u], m, VT[u] + 8 * m):
                    fill.append((it, -1))
        fidx["VP"] = len(fill) - 1

    def OC(qt):
        gate = min(m_end(f"P{qt}") + 2, 24 * 12 - 1)
        for r in range(4):
            d = STG + 4 * (r & 1)
            conv(qt, r, d, gate)
            q.dsw(f"ds_write_b128 {vOw}, {rng('v', d, 4)} offset:{(r * 6 + qt) * 1024}", [vOw] + R("v", d, 4), tag="o")
            one(gate)

    RINGC = [RING[2], KV, 128, RING[3]]
    BFC = 0
    TC = 48

    wo_idx = [0]

    def wo_loads(dst, first):
        out = []
        if NSP:
            idx = wo_idx[0]
            wo_idx[0] += 1
            q.salu(f"s_add_u32 s40, s99, {(idx & 7) * 65536 + (idx >> 3) * 128}", ["s99"], ["s40"])
            q.salu("s_addc_u32 s41, s100, 0", ["s100"], ["s41"])
        else:
            q.salu("s_lshl_b32 s71, s101, 15", ["s101"], ["s71"])
            q.salu("s_add_u32 s40, s99, s71", ["s99", "s71"], ["s40"])
            q.salu("s_addc_u32 s41, s100, 0", ["s100"], ["s41"])
            q.salu("s_add_u32 s101, s101, 1", ["s101"], ["s101"])
            q.salu("s_and_b32 s101, s101, 15", ["s101"], ["s101"])
        for s_ in range(8):
            so = "s59" if s_ >= 4 else "0"
            q.vload(f"buffer_load_dwordx4 {rng('v', dst + 4 * s_, 4)}, {vWo}, s[40:43], {so} offen offset:{(s_ & 3) * 1024}{NTW}",
                    [vWo] + R("s", 40, 4) + ([so] if s_ >= 4 else []), R("v", dst + 4 * s_, 4))
            out.append(g.take())
        return out

    def WO(k, gate):
        for it in wo_loads(RINGC[k], k == 0):
            fill.append((it, gate))

    def EPI():
        if not FUSE:
            return
        q.salu("s_mov_b32 s20, s78", ["s78"], ["s20"])
        q.salu("s_mov_b32 s21, s79", ["s79"], ["s21"])
        q.salu("s_mov_b32 s22, 256", [], ["s22"])
        q.salu("s_mov_b32 s23, 0x20000", [], ["s23"])
        q.valu(f"v_mov_b32 v{STG}, s6", ["s6"], [f"v{STG}"])
        q.valu(f"v_mov_b32 v{STG + 1}, s7", ["s7"], [f"v{STG + 1}"])
        q.valu(f"v_mov_b32 v{STG + 2}, 0", [], [f"v{STG + 2}"])
        q.valu(f"v_mov_b32 v{STG + 3}, 0", [], [f"v{STG + 3}"])
        q.salu("s_mov_b64 exec, s[4:5]", ["s4", "s5"], ["exec"])
        q.vload(f"buffer_atomic_cmpswap_x2 {rng('v', STG, 4)}, off, s[20:23], 0 sc0",
                R("v", STG, 4) + R("s", 20, 4), R("v", STG, 2))
        q.salu("s_mov_b64 exec, -1", [], ["exec"])
        fill.append((g.take(), -1))

    def EPR():
        if not FUSE:
            return
        q.valu(f"v_readfirstlane_b32 s70, v{STG}", [f"v{STG}"], ["s70"])
        q.valu(f"v_readfirstlane_b32 s71, v{STG + 1}", [f"v{STG + 1}"], ["s71"])
        q.salu("s_or_b32 s3, s70, s71", ["s70", "s71"], ["s3"])
        q.salu("s_cmp_eq_u32 s3, 0", ["s3"], ["scc"])
        q.salu("s_cselect_b32 s6, s6, s70", ["scc", "s6", "s70"], ["s6"])
        q.salu("s_cselect_b32 s7, s7, s71", ["scc", "s7", "s71"], ["s7"])
        fill.append((g.take(), -1))

    EPI(); C(0); C(1); M(0); C(2); VP(); WO(0, -1); M(1); C(3); EPR(); OC(0); M(2); C(4); OC(1); M(3); C(5)
    WO(1, m_end("S5")); OC(2); M(4); OC(3); M(5); WO(2, -1); OC(4); WO(3, m_end("P5")); OC(5)

    for nm in order:
        qt = int(nm[1])
        if nm[0] == "S":
            for r in range(4):
                gate = fidx[("C", qt, r)]
                if qt >= 2:
                    gate = max(gate, fidx[("M", qt - 2)])
                for kt in range(6):
                    d = ("v", SACC[qt & 1] + 4 * kt)
                    q.mfma16(d, kfrag(kt, r), ("v", QF + 4 * r), None if r == 0 else d)
                    main.append((g.take(), gate))
        else:
            gate = max(fidx[("M", qt)], fidx["VP"])
            for u in range(3):
                for j in range(8):
                    q.mfma16(acc(j, qt), ("v", VT[u] + 4 * j), ("v", PB + 4 * u), None if u == 0 else acc(j, qt))
                    main.append((g.take(), gate))
    p.ins.extend(gated_merge(main, fill, 5))
    if "st0" not in FLAGS:
        stamp(p, 3 if FUSE else 5)
    p.barrier(needs=["o"])


    def o_reads(step, bf):
        out = []
        q.salu(f"s_add_u32 s71, s58, {step}", ["s58"], ["s71"])
        q.salu("s_and_b32 s71, s71, 15", ["s71"], ["s71"])
        q.salu("s_mul_i32 s71, s71, 6144", ["s71"], ["s71"])
        q.valu(f"v_add_u32 v224, s71, {vOr}", ["s71", vOr], ["v224"])
        out.append(g.take())
        for qt in range(6):
            d = bf + 4 * qt
            q.dsr(f"ds_read_b128 {rng('v', d, 4)}, v224 offset:{qt * 1024}", ["v224"], R("v", d, 4))
            out.append(g.take())
        return out

    def next_c(s_):
        if s_ + 4 < 16 and "nold" not in FLAGS:
            return wo_loads(RINGC[s_ % 4], False)
        return []

    if NSP:
        FT = 160
        ET = 176

        def acc2(H, t, qt):
            return ("a", (H * 24 + qt * 4 + t) * 4)

        def o_reads2(k32, bf):
            out = []
            for qt in range(6):
                d = bf + 4 * qt
                off = k32 * 6144 + qt * 1024
                if off < 65536:
                    q.dsr(f"ds_read_b128 {rng('v', d, 4)}, {vOr} offset:{off}", [vOr], R("v", d, 4))
                else:
                    q.dsr(f"ds_read_b128 {rng('v', d, 4)}, v224 offset:{off - 65536}", ["v224"], R("v", d, 4))
                out.append(g.take())
            return out

        def prep(raw, grp, tdst):
            mu, e = grp >> 1, grp & 1
            out = []
            m = 0x00ff00ff if mu == 0 else 0xff00ff00
            q.salu(f"s_mov_b32 vcc_lo, {m:#x}", [], ["vcc"])
            q.salu(f"s_mov_b32 vcc_hi, {m:#x}", [], ["vcc"])
            for s_ in range(8):
                own = raw + 4 * s_ + e + 2 * mu
                oth = raw + 4 * s_ + e + 2 * (1 - mu)
                q.valu(f"v_cndmask_b32_dpp v{FT + s_}, v{oth}, v{own}, vcc row_ror:8 row_mask:0xf bank_mask:0xf",
                       [f"v{oth}", f"v{own}", "vcc"], [f"v{FT + s_}"])
                out.append(g.take())
                if s_ & 1:
                    pp = s_ >> 1
                    for hi in range(2):
                        d = tdst + 4 * hi + pp
                        sel = "s66" if hi else "s65"
                        q.valu(f"v_perm_b32 v{d}, v{FT + s_}, v{FT + s_ - 1}, {sel}", [f"v{FT + s_}", f"v{FT + s_ - 1}", sel], [f"v{d}"])
                        out.append(g.take())
            return out

        def epi(H):
            out = []
            k = 0
            for qt in range(6):
                for rr in range(2):
                    d = ET + 4 * (k & 1)
                    k += 1
                    for c in range(4):
                        r = 2 * rr + (c >> 1)
                        t = 2 * (c & 1)
                        t0 = ET + 8 + 2 * (c & 3)
                        a0 = acc2(H, t, qt)[1] + r
                        a1 = acc2(H, t + 1, qt)[1] + r
                        q.valu(f"v_accvgpr_read_b32 v{t0}, a{a0}", [f"a{a0}"], [f"v{t0}"])
                        out.append(g.take())
                        q.valu(f"v_accvgpr_read_b32 v{t0 + 1}, a{a1}", [f"a{a1}"], [f"v{t0 + 1}"])
                        out.append(g.take())
                        q.valu(f"v_cvt_pk_bf16_f32 v{d + c}, v{t0}, v{t0 + 1}", [f"v{t0}", f"v{t0 + 1}"], [f"v{d + c}"])
                        out.append(g.take())
                    off = H * 12288 + qt * 2048 + rr * 1024
                    so = sK(off >> 12)
                    q.vstore(f"buffer_store_dwordx4 {rng('v', d, 4)}, {vSt}, s[36:39], {so} offen offset:{off & 4095}{NTS}",
                             R("v", d, 4) + [vSt] + R("s", 36, 4) + ([so] if so != "0" else []))
                    out.append(g.take())
            return out

        V(f"v_add_u32 v224, 0x10000, {vOr}", [vOr], ["v224"])
        for it in o_reads2(0, BFC):
            p.ins.extend(it)
        for it in prep(RINGC[0], 0, TC):
            p.ins.extend(it)
        ep0 = []
        for idx in range(16):
            H = idx >> 3
            if idx == 8:
                stamp(p, 1)
            if idx == 12:
                ep0 = epi(0)
            for grp in range(4):
                mu, e = grp >> 1, grp & 1
                bf = BFC + 24 * mu
                tcur = TC + 8 * (grp & 1)
                tnext = TC + 8 * ((grp + 1) & 1)
                mf = []
                for qt in range(6):
                    for tt in range(2):
                        a_ = acc2(H, 2 * e + tt, qt)
                        q.mfma16(a_, ("v", tcur + 4 * tt), ("v", bf + 4 * qt), None if ((idx & 7) == 0 and mu == 0) else a_)
                        mf.append(g.take())
                fl = []
                if grp < 3:
                    fl += prep(RINGC[idx % 4], grp + 1, tnext)
                elif idx + 1 < 16:
                    fl += prep(RINGC[(idx + 1) % 4], 0, tnext)
                if e == 0:
                    kn = 2 * idx + mu + 1
                    if kn < 32:
                        fl += o_reads2(kn & 15, BFC + 24 * (1 - mu))
                if grp == 3:
                    fl = next_c(idx) + fl
                if ep0:
                    n = 13
                    fl += ep0[:n]
                    ep0 = ep0[n:]
                p.ins.extend(spread(mf, fl))
        assert not ep0
        if "st0" not in FLAGS:
            stamp(p, 4)
        for it in epi(1):
            p.ins.extend(it)
    else:
        gemm(RINGC, BFC, TC, o_reads, next_c)
        if "st0" not in FLAGS:
            stamp(p, 4 if FUSE else 6)
        k = 0
        for qt in range(6):
            for r in range(4):
                d = 64 + 4 * (k % 16)
                k += 1
                for jj in range(4):
                    t0 = 228 + 2 * jj
                    a0 = acc(2 * jj, qt)[1] + r
                    a1 = acc(2 * jj + 1, qt)[1] + r
                    V(f"v_accvgpr_read_b32 v{t0}, a{a0}", [f"a{a0}"], [f"v{t0}"])
                    V(f"v_accvgpr_read_b32 v{t0 + 1}, a{a1}", [f"a{a1}"], [f"v{t0 + 1}"])
                    V(f"v_cvt_pk_bf16_f32 v{d + jj}, v{t0}, v{t0 + 1}", [f"v{t0}", f"v{t0 + 1}"], [f"v{d + jj}"])
                so = sK(qt)
                p.vstore(f"buffer_store_dwordx4 {rng('v', d, 4)}, {vSt}, s[36:39], {so} offen offset:{r * 1024}{NTS}",
                         R("v", d, 4) + [vSt] + R("s", 36, 4) + ([so] if qt else []))
    if FUSE:
        fused_tail(p)
    else:
        if PROF:
            p.waitall()
        if "st0" not in FLAGS:
            stamp(p, 7)
    dump_stamps(p, 8)
    p.label("L_k1_end")
    p.other("s_endpgm")
    p.label("L_k1_code_end")
    return p


def gen_k2():
    p = Prog()
    S = p.salu
    V = p.valu
    S("s_cmp_ge_u32 s2, 192", ["s2"], ["scc"])
    S("s_cbranch_scc1 L_k2_end", ["scc"])
    p.other("s_load_dwordx2 s[10:11], s[0:1], 80")
    p.other("s_load_dwordx2 s[16:17], s[0:1], 96")
    V("v_lshrrev_b32 v254, 6, v0", ["v0"], ["v254"])
    V("v_and_b32 v255, 63, v0", ["v0"], ["v255"])
    V("v_readfirstlane_b32 s44, v254", ["v254"], ["s44"])
    S("s_mul_i32 s3, s2, 43691", ["s2"], ["s3"])
    S("s_lshr_b32 s47, s3, 18", ["s3"], ["s47"])
    S("s_mul_i32 s3, s47, 6", ["s47"], ["s3"])
    S("s_sub_u32 s46, s2, s3", ["s2", "s3"], ["s46"])
    S("s_and_b32 s48, s47, 15", ["s47"], ["s48"])
    S("s_lshr_b32 s49, s47, 4", ["s47"], ["s49"])
    p.other("s_waitcnt lgkmcnt(0)")
    S("s_mul_i32 s3, s47, 786432", ["s47"], ["s3"])
    S("s_add_u32 s36, s16, s3", ["s16", "s3"], ["s36"])
    S("s_addc_u32 s37, s17, 0", ["s17"], ["s37"])
    S("s_mov_b32 s38, 786432", [], ["s38"])
    S("s_mov_b32 s39, 0x20000", [], ["s39"])
    S("s_mov_b32 s28, s10", ["s10"], ["s28"])
    S("s_mov_b32 s29, s11", ["s11"], ["s29"])
    S("s_mov_b32 s30, 3145728", [], ["s30"])
    S("s_mov_b32 s31, 0x20000", [], ["s31"])
    S("s_mul_i32 s50, s44, 24576", ["s44"], ["s50"])
    S("s_lshl_b32 s3, s46, 12", ["s46"], ["s3"])
    S("s_add_u32 s50, s50, s3", ["s50", "s3"], ["s50"])
    V("v_lshlrev_b32 v250, 4, v255", ["v255"], ["v250"])
    V("v_add_u32 v250, s50, v250", ["s50", "v250"], ["v250"])
    for hg in range(1, 8):
        S(f"s_mov_b32 s{51 + hg}, {hg * 98304}", [], [f"s{51 + hg}"])
    for hg in range(8):
        for r in range(4):
            d = (hg * 4 + r) * 4
            so = "0" if hg == 0 else f"s{51 + hg}"
            p.vload(f"buffer_load_dwordx4 {rng('v', d, 4)}, v250, s[36:39], {so} offen offset:{r * 1024}{NTP}",
                    ["v250"] + R("s", 36, 4) + ([so] if hg else []), R("v", d, 4))
    S("s_mul_i32 s3, s48, 96", ["s48"], ["s3"])
    S("s_lshl_b32 s50, s46, 4", ["s46"], ["s50"])
    S("s_add_u32 s3, s3, s50", ["s3", "s50"], ["s3"])
    S("s_lshl_b32 s3, s3, 11", ["s3"], ["s3"])
    S("s_lshl_b32 s50, s49, 10", ["s49"], ["s50"])
    S("s_add_u32 s3, s3, s50", ["s3", "s50"], ["s3"])
    S("s_lshl_b32 s50, s44, 8", ["s44"], ["s50"])
    S("s_add_u32 s3, s3, s50", ["s3", "s50"], ["s3"])
    V("v_and_b32 v251, 15, v255", ["v255"], ["v251"])
    V("v_lshrrev_b32 v252, 4, v255", ["v255"], ["v252"])
    V("v_lshlrev_b32 v252, 6, v252", ["v252"], ["v252"])
    V("v_lshl_add_u32 v251, v251, 11, v252", ["v251", "v252"], ["v251"])
    V("v_add_u32 v251, s3, v251", ["s3", "v251"], ["v251"])
    S("s_mov_b32 s60, 0xffff0000", [], ["s60"])
    ACC = 128
    for hg in range(8):
        for r in range(4):
            for jj in range(4):
                s_ = (hg * 4 + r) * 4 + jj
                lo = ACC + (r * 4 + jj) * 2
                if hg == 0:
                    V(f"v_lshlrev_b32 v{lo}, 16, v{s_}", [f"v{s_}"], [f"v{lo}"])
                    V(f"v_and_b32 v{lo + 1}, s60, v{s_}", ["s60", f"v{s_}"], [f"v{lo + 1}"])
                else:
                    V(f"v_lshlrev_b32 v248, 16, v{s_}", [f"v{s_}"], ["v248"])
                    V(f"v_and_b32 v249, s60, v{s_}", ["s60", f"v{s_}"], ["v249"])
                    V(f"v_add_f32 v{lo}, v{lo}, v248", [f"v{lo}", "v248"], [f"v{lo}"])
                    V(f"v_add_f32 v{lo + 1}, v{lo + 1}, v249", [f"v{lo + 1}", "v249"], [f"v{lo + 1}"])
    for r in range(4):
        for jj in range(4):
            lo = ACC + (r * 4 + jj) * 2
            V(f"v_cvt_pk_bf16_f32 v{160 + r * 4 + jj}, v{lo}, v{lo + 1}", [f"v{lo}", f"v{lo + 1}"], [f"v{160 + r * 4 + jj}"])
        p.vstore(f"buffer_store_dwordx4 {rng('v', 160 + 4 * r, 4)}, v251, s[28:31], 0 offen offset:{r * 16}",
                 R("v", 160 + 4 * r, 4) + ["v251"] + R("s", 28, 4))
    p.label("L_k2_end")
    p.other("s_endpgm")
    return p


HEADER = """; Two-kernel implementation (generated by a hand-written python generator).
; k1: q-projection + attention + partial output projection (per 4 heads) -> bf16 partials in d_ws
; @launch kernel=k1_kernel grid=(256,1,1) block=(256,1,1) lds=163840
; @launch kernel=k2_kernel grid=(192,1,1) block=(256,1,1) lds=0
.amdgcn_target "amdgcn-amd-amdhsa--gfx950"
.text
"""


HEADER1 = """; Single fused kernel (generated by a hand-written python generator).
; q-projection + attention + partial output projection (per 4 heads) -> bf16 partials in d_ws,
; @launch grid=(256,1,1) block=(256,1,1) lds=163840
.amdgcn_target "amdgcn-amd-amdhsa--gfx950"
.text
"""


def kd(name, nvgpr, accum):
    return f""".amdhsa_kernel {name}
  .amdhsa_next_free_vgpr {nvgpr}
  .amdhsa_next_free_sgpr 102
  .amdhsa_accum_offset {accum}
  .amdhsa_group_segment_fixed_size 0
  .amdhsa_kernarg_size 104
  .amdhsa_user_sgpr_count 2
  .amdhsa_user_sgpr_kernarg_segment_ptr 1
  .amdhsa_system_sgpr_workgroup_id_x 1
.end_amdhsa_kernel
"""


def main():
    t1, i1 = finalize(gen_k1())
    t2, i2 = finalize(gen_k2())
    if FUSE:
        s = HEADER1
        name = NAME + "_kernel"
        s += f".globl {name}\n.p2align 8\n.type {name},@function\n{name}:\n{t1}"
        s += '.section .rodata,"a"\n.p2align 6\n'
        s += kd(name, 512, 256)
    else:
        s = HEADER
        for name, t in (("k1_kernel", t1), ("k2_kernel", t2)):
            s += f".globl {name}\n.p2align 8\n.type {name},@function\n{name}:\n{t}"
        s += '.section .rodata,"a"\n.p2align 6\n'
        s += kd("k1_kernel", 512, 256)
        s += ".p2align 6\n"
        s += kd("k2_kernel", 256, 256)
    open(OUT, "w").write(s)
    print("k1 instrs", len(i1), "k2 instrs", len(i2))


if __name__ == "__main__":
    main()
```
